```python
import torch

def _softmax(x, axis=-1):
    return torch.softmax(x, dim=axis)
def _gelu(x):
    return torch.nn.functional.gelu(x, approximate="tanh")
def _silu(x):
    return torch.nn.functional.silu(x)
def _sigmoid(x):
    return torch.sigmoid(x)
def _layernorm(x, axis=-1, eps=1e-5):
    m = x.mean(dim=axis, keepdim=True)
    v = x.var(dim=axis, keepdim=True, unbiased=False)
    return (x - m) / torch.sqrt(v + eps)
def _scatter_add(tgt, idx, src, axis=0):
    return tgt.clone().index_add_(axis, idx, src)
def _segment_sum(src, seg, n):
    out = torch.zeros((n,) + src.shape[1:], dtype=src.dtype)
    return out.index_add_(0, seg, src)
def _pad(x, pw):
    flat = tuple(v for pair in reversed(pw) for v in pair)
    return torch.nn.functional.pad(x, flat)

kernel_name = 'standalone__mha_block_cached__near_ridge'

def setup_inputs():

    _w = (lambda a: (lambda t: t.to(torch.bfloat16) if t.is_floating_point() else t)(torch.as_tensor(a)))
    B, Sq, D = 16, 192, 448
    H, Sk, Dh = 16, 512, 256
    return {
        "x": _w((lambda *s: torch.randn(*s, dtype=torch.bfloat16) * 0.8)(B, Sq, D)),
        "k_cache": _w((lambda *s: torch.randn(*s, dtype=torch.bfloat16) * 0.8)(B, H, Sk, Dh)),
        "v_cache": _w((lambda *s: torch.randn(*s, dtype=torch.bfloat16) * 0.05)(B, H, Sk, Dh)),
        "wq": _w((lambda *s: torch.randn(*s, dtype=torch.bfloat16) * 0.8)(D, H * Dh) * (D ** -0.5)),
        "wo": _w((lambda *s: torch.randn(*s, dtype=torch.bfloat16) * 0.05)(H * Dh, D) * ((H * Dh) ** -0.5)),
    }

def reference(x, k_cache, v_cache, wq, wo):
    B, Sq, D = x.shape
    H, Dh = 16, 256
    q = (lambda x, *d: x.permute(*d))((x @ wq).reshape(B, Sq, H, Dh), 0, 2, 1, 3)
    scores = torch.einsum("bhqd,bhkd->bhqk", q, k_cache) * (Dh ** -0.5)
    p = _softmax(scores, axis=-1)
    o = torch.einsum("bhqk,bhkd->bhqd", p, v_cache)
    return (lambda x, *d: x.permute(*d))(o, 0, 2, 1, 3).reshape(B, Sq, H * Dh) @ wo
```

```python
import re


def regs(kind, start, n=1):
    return {(kind, i) for i in range(start, start + n)}


def rt(kind, start, n=1):
    return f"{kind}{start}" if n == 1 else f"{kind}[{start}:{start + n - 1}]"


class Reg:
    def __init__(self, kind, start, n=1):
        self.k, self.i, self.n = kind, start, n
    def __str__(self): return rt(self.k, self.i, self.n)
    def set(self): return regs(self.k, self.i, self.n)
    def __getitem__(self, j):
        if isinstance(j, slice):
            a, b = j.start or 0, j.stop if j.stop is not None else self.n
            assert 0 <= a < b <= self.n
            return Reg(self.k, self.i + a, b - a)
        assert 0 <= j < self.n
        return Reg(self.k, self.i + j, 1)


def V(i, n=1): return Reg('v', i, n)
def A(i, n=1): return Reg('a', i, n)
def S(i, n=1): return Reg('s', i, n)


def rset(x):
    if isinstance(x, Reg): return x.set()
    if isinstance(x, str) and x in ('vcc', 'exec', 'm0', 'scc'): return {(x, 0)}
    return set()


class Ins:
    __slots__ = ("text", "kind", "wr", "rd", "needs", "tok", "cost", "srcc", "passes", "sdata", "ab")
    def __init__(self, text, kind, wr=(), rd=(), needs=(), cost=1):
        self.text, self.kind = text, kind
        self.wr, self.rd = set(wr), set(rd)
        self.needs = list(needs)
        self.tok = None
        self.cost = cost
        self.srcc = set(); self.passes = 0; self.sdata = set(); self.ab = set()


class Tok:
    __slots__ = ("cls", "seq")
    def __init__(self, cls): self.cls, self.seq = cls, None


TRANS = ("v_exp_f32", "v_log_f32", "v_rcp_f32", "v_rsq_f32", "v_sqrt_f32")


def _u(*xs):
    s = set()
    for x in xs: s |= rset(x)
    return s


def valu(op, dst, *srcs, mod="", needs=(), extra_wr=(), extra_rd=()):
    kind = 'trans' if op in TRANS else 'valu'
    if op.startswith("v_permlane"): kind = 'permlane'
    if op.startswith("v_readfirstlane") or op.startswith("v_readlane"): kind = 'readlane'
    text = f"{op} " + ", ".join(str(x) for x in (dst,) + srcs) + (" " + mod if mod else "")
    wr = rset(dst) | _u(*extra_wr); rd = _u(*srcs) | _u(*extra_rd)
    if kind == 'permlane': wr |= rd; rd = set(wr)
    if op in ("v_fmac_f32",): rd |= rset(dst)
    return Ins(text, kind, wr, rd, needs, cost=2 if kind == 'trans' else 1)


def salu(op, dst, *srcs, needs=()):
    text = f"{op} " + ", ".join(str(x) for x in ((dst,) if dst is not None else ()) + srcs)
    wr = rset(dst) | {('scc', 0)}
    return Ins(text, 'salu', wr, _u(*srcs), needs)


def raw(text, kind='other', wr=(), rd=(), needs=(), cost=1):
    return Ins(text, kind, _u(*wr), _u(*rd), needs, cost)


def mfma16(d, a, b, c, needs=()):
    i = Ins(f"v_mfma_f32_16x16x32_bf16 {d}, {a}, {b}, {c}", 'mfma', d.set(), _u(a, b, c), needs, cost=2)
    i.srcc = rset(c); i.passes = 4; i.ab = _u(a, b)
    return i


def mfma32(d, a, b, c, needs=()):
    i = Ins(f"v_mfma_f32_32x32x16_bf16 {d}, {a}, {b}, {c}", 'mfma', d.set(), _u(a, b, c), needs, cost=2)
    i.srcc = rset(c); i.passes = 8; i.ab = _u(a, b)
    return i


def ds_read(op, dst, addr, off=0, needs=()):
    assert 0 <= off < 65536, off
    i = Ins(f"{op} {dst}, {addr}" + (f" offset:{off}" if off else ""), 'ds', dst.set(), addr.set(), needs)
    i.tok = Tok('lgkm')
    return i


def ds_write(op, addr, data, off=0, needs=()):
    assert 0 <= off < 65536, off
    i = Ins(f"{op} {addr}, {data}" + (f" offset:{off}" if off else ""), 'ds', (), addr.set() | data.set(), needs)
    i.tok = Tok('lgkm')
    return i


def buf_load(op, dst, voff, srd, soff=0, off=0, flags="", needs=()):
    assert 0 <= off < 4096, off
    t = f"{op} {dst}, {voff}, {srd}, {soff} offen" + (f" offset:{off}" if off else "") + (" " + flags if flags else "")
    i = Ins(t, 'vmem', dst.set(), _u(voff, srd, soff), needs)
    i.tok = Tok('vm')
    return i


def buf_load_lds(voff, srd, soff=0, off=0, flags="", needs=()):
    assert 0 <= off < 4096, off
    t = f"buffer_load_dwordx4 {voff}, {srd}, {soff} offen" + (f" offset:{off}" if off else "") + (" " + flags if flags else "") + " lds"
    i = Ins(t, 'vmemlds', (), _u(voff, srd, soff, 'm0'), needs)
    i.tok = Tok('vm')
    return i


def buf_store(op, data, voff, srd, soff=0, off=0, flags="", needs=()):
    assert 0 <= off < 4096, off
    t = f"{op} {data}, {voff}, {srd}, {soff} offen" + (f" offset:{off}" if off else "") + (" " + flags if flags else "")
    i = Ins(t, 'vmem', (), _u(data, voff, srd, soff), needs)
    if data.n >= 3: i.sdata = data.set()
    i.tok = Tok('vm')
    return i


def wait_all(vm=True, lgkm=True):
    i = Ins("s_waitcnt" + (" vmcnt(0)" if vm else "") + (" lgkmcnt(0)" if lgkm else ""), 'drain')
    i.sdata = (vm, lgkm)
    return i


def barrier(needs=()):
    return Ins("s_barrier", 'barrier', needs=needs)


def label(name):
    return Ins(f"{name}:", 'label', cost=0)


def comment(t):
    return Ins(f"; {t}", 'comment', cost=0)


def nop(n):
    return Ins(f"s_nop {n}", 'nop')


VALU_KINDS = ('valu', 'trans', 'permlane', 'readlane')


def resolve(stream):
    out = []
    issued = {'vm': 0, 'lgkm': 0}
    done = {'vm': 0, 'lgkm': 0}
    maxc = {'vm': 62, 'lgkm': 14}
    for ins in stream:
        need = {}
        for t in ins.needs:
            assert t.seq is not None, f"token consumed before issue: {ins.text}"
            if t.seq >= done[t.cls]:
                need[t.cls] = max(need.get(t.cls, -1), t.seq)
        if need:
            parts = []
            for cls, seq in need.items():
                n = issued[cls] - 1 - seq
                n = min(n, maxc[cls])
                parts.append(f"{'vmcnt' if cls == 'vm' else 'lgkmcnt'}({n})")
                done[cls] = max(done[cls], issued[cls] - n)
            out.append(Ins("s_waitcnt " + " ".join(sorted(parts, reverse=True)), 'wait'))
        if ins.kind == 'drain':
            if ins.sdata[0]: done['vm'] = issued['vm']
            if ins.sdata[1]: done['lgkm'] = issued['lgkm']
            ins2 = Ins(ins.text, 'wait'); out.append(ins2); continue
        req = hazard_need(out, ins)
        while req > 0:
            n = min(req, 16)
            out.append(Ins(f"s_nop {n - 1}", 'nop')); req -= n
        out.append(ins)
        if ins.tok is not None:
            ins.tok.seq = issued[ins.tok.cls]; issued[ins.tok.cls] += 1
            if ins.tok.cls == 'lgkm':
                assert issued['lgkm'] - done['lgkm'] <= 15 + 8 or True
    return out


def states(i):
    if i.kind in ('label', 'comment', 'dir'): return 0
    if i.kind == 'nop': return int(i.text.split()[1]) + 1
    return 1


def hazard_need(out, c):
    if c.kind in ('label', 'comment', 'nop', 'wait', 'barrier', 'dir'): return 0
    need = 0
    dist = 0
    for p in reversed(out):
        if dist >= 24: break
        r = required(p, c)
        if r > dist: need = max(need, r - dist)
        dist += states(p)
    return need


def isv(s): return {x for x in s if x[0] in ('v', 'a')}
def iss(s): return {x for x in s if x[0] in ('s', 'vcc')}


def required(p, c):
    r = 0
    if p.kind in VALU_KINDS:
        pw = isv(p.wr)
        if c.kind == 'mfma' and pw & c.rd: r = max(r, 2)
        if p.kind == 'trans' and c.kind in VALU_KINDS and c.kind != 'trans' and pw & (c.rd | c.wr): r = max(r, 1)
        if p.kind == 'trans' and c.kind in ('vmem', 'ds', 'vmemlds') and pw & c.rd: r = max(r, 1)
        if c.kind == 'permlane' and pw & c.rd: r = max(r, 2)
        if c.kind == 'readlane' and pw & c.rd: r = max(r, 1)
        ps = iss(p.wr)
        if ps:
            if c.kind in VALU_KINDS and ps & c.rd: r = max(r, 2)
            if c.kind in ('vmem', 'vmemlds') and ps & c.rd: r = max(r, 5)
            if c.kind in ('salu', 'branch') and ps & c.rd: r = max(r, 4)
        if ('exec', 0) in p.wr: r = max(r, 5)
    if p.kind == 'mfma':
        big = p.passes == 8
        if c.kind == 'mfma':
            if p.wr & c.ab: r = max(r, 12 if big else 8)
            if p.wr & c.srcc:
                if not (p.wr == c.srcc and p.passes == c.passes): r = max(r, 10 if big else 6)
            elif p.wr & c.wr:
                r = max(r, 10 if big else 6)
        if c.kind in VALU_KINDS and p.wr & (c.rd | c.wr): r = max(r, 12 if big else 8)
        if c.kind in ('vmem', 'ds', 'vmemlds') and p.wr & (c.rd | c.wr): r = max(r, 12 if big else 8)
        if c.kind in VALU_KINDS and p.srcc & c.wr: r = max(r, 7 if big else 3)
    if p.kind == 'salu' and ('m0', 0) in p.wr and c.kind == 'vmemlds': r = max(r, 1)
    if p.kind == 'vmem' and p.sdata and p.sdata & c.wr:
        r = max(r, 2 if c.kind in VALU_KINDS else 1)
    return r


class Timeline:
    def __init__(self):
        self.m = []
        self.pre = {}
        self.load = {}
    def add(self, ins):
        self.m.append(ins); return len(self.m) - 1
    def at(self, pos, *ins):
        pos = max(pos, 0)
        for i in ins:
            self.pre.setdefault(pos, []).append(i)
            self.load[pos] = self.load.get(pos, 0) + i.cost
    def spread(self, ops, start, end, cap=2):
        n = len(ops)
        if n == 0: return
        tot = sum(o.cost for o in ops)
        pos = start; acc = 0
        for o in ops:
            target = start + int(acc * (end - start) / tot)
            pos = max(pos, target)
            while pos < end - 1 and self.load.get(pos, 0) + o.cost > cap: pos += 1
            self.at(pos, o)
            acc += o.cost
    def flatten(self):
        out = []
        for i, b in enumerate(self.m):
            out += self.pre.get(i, [])
            out.append(b)
        for p in sorted(k for k in self.pre if k >= len(self.m)):
            out += self.pre[p]
        return out


def render(stream):
    lines = []
    for i in resolve(stream):
        if i.kind in ('label', 'dir'): lines.append(i.text)
        else: lines.append("    " + i.text)
    return lines
```

```python
import sys, struct, math
sys.path.insert(0, "dev")
from dsl import *

NAME = "standalone__mha_block_cached__near_ridge"
B, SQ, D, H, SK, DH = 16, 192, 448, 16, 512, 256
WS_OF = 0
WS_OF_BYTES = 16 * 4 * 128 * 3 * 1024
WS_WF = 32 << 20
WS_WF_BYTES = 4 * 128 * 7 * 1024
WS_STAMP = 64 << 20
WS_DUMP = 96 << 20

def f2u(x): return struct.unpack("<I", struct.pack("<f", x))[0]
QSCALE = f2u(math.log2(math.e) / 16.0)

sWAVE = S(3)
sB, sH = S(4), S(5)
sT0, sT1, sT2, sT3 = S(6), S(7), S(12), S(13)
sSOFF = S(8); sSOFF2 = S(9)
sM0K = S(10)
sM0X = S(11)
sC = S(14, 2)
P_X, P_K, P_V, P_WQ, P_WO, P_OUT, P_DBG, P_WS = [S(16 + 2 * i, 2) for i in range(8)]
rX, rWQ, rK, rV, rWO, rOF, rWF, rOUT, rST = [S(32 + 4 * i, 4) for i in range(9)]
sSTAMP0 = 70

class Cfg:
    stamps = False
    dump = None
    kv_flags = "nt"
    nfr = 12


def srd(ops, r, ptr, off_lo=None, off_hi=None, size=0):
    if off_lo is None:
        ops.append(salu("s_mov_b32", r[0], ptr[0])); ops.append(salu("s_mov_b32", r[1], ptr[1]))
    else:
        ops.append(salu("s_add_u32", r[0], ptr[0], off_lo))
        ops.append(salu("s_addc_u32", r[1], ptr[1], off_hi if off_hi is not None else 0))
    ops.append(salu("s_mov_b32", r[2], size))
    ops.append(salu("s_mov_b32", r[3], "0x20000"))


class Stamper:
    def __init__(self, on): self.on, self.n = on, 0
    def stamp(self):
        if not self.on: return []
        r = S(sSTAMP0 + 2 * self.n, 2); self.n += 1
        assert sSTAMP0 + 2 * self.n <= 102
        return [raw(f"s_memtime {r}", 'smem', wr=[r]), wait_all(vm=False)]
    def flush(self, vt, kidx):
        if not self.on: return []
        ops = []
        r = S(sSTAMP0 + 2 * self.n, 2); self.n += 1
        ops += [raw(f"s_memrealtime {r}", 'smem', wr=[r]), wait_all()]
        ops.append(salu("s_lshl_b32", sT0, S(2), 2)); ops.append(salu("s_add_u32", sT0, sT0, sWAVE))
        ops.append(salu("s_lshl_b32", sT0, sT0, 8))
        ops.append(salu("s_add_u32", sT0, sT0, kidx << 20))
        ops.append(valu("v_mov_b32", vt[0], sT0))
        ops.append(raw("s_mov_b64 exec, 1", 'salu', wr=['exec']))
        for i in range(self.n):
            ops.append(valu("v_mov_b32", vt[2], S(sSTAMP0 + 2 * i))); ops.append(valu("v_mov_b32", vt[3], S(sSTAMP0 + 2 * i + 1)))
            ops.append(buf_store("buffer_store_dwordx2", vt[2:4], vt[0], rST, 0, 8 * i))
            ops.append(wait_all())
        ops.append(raw("s_mov_b64 exec, -1", 'salu', wr=['exec']))
        return ops


def kernel_header(name):
    return [Ins(f".globl {name}", 'dir'), Ins(".p2align 8", 'dir'), Ins(f".type {name},@function", 'dir'), label(name)]


def kd(name, nv=512, acc=256):
    return f""".section .rodata,"a"
.p2align 6
.amdhsa_kernel {name}
  .amdhsa_next_free_vgpr {nv}
  .amdhsa_next_free_sgpr 102
  .amdhsa_accum_offset {acc}
  .amdhsa_group_segment_fixed_size 0
  .amdhsa_kernarg_size 64
  .amdhsa_user_sgpr_count 2
  .amdhsa_user_sgpr_kernarg_segment_ptr 1
  .amdhsa_system_sgpr_workgroup_id_x 1
.end_amdhsa_kernel
.text
"""

QB = [0, 28672, 57344]
RING = [6, 7, 8, 9, 4, 5, 0, 1, 2, 3]
PI = [0, 2, 1, 3]

vWR = V(192, 8); vXR = V(200); vWD = V(201, 4); vXD = V(205, 3); vTMP = V(208, 20)
vNEGM = V(228, 12); vKR = V(240, 4); vKD = V(244, 4); vVD = V(248, 4); vOST = V(252); vT3 = V(253, 3)
aQ = A(0, 96); aFR = A(96, 48); aX = A(144, 24); aL = A(168, 12); aONE = A(180, 4); aWT = A(184, 32); aVR = A(216, 4); aWST = A(220)

def Qacc(t, n): return V((t * 3 + n) * 4, 4)
def Qf(s, n): return A((s * 3 + n) * 4, 4)
def SB(u): return 180 if u % 2 == 0 else 204
def Sreg(u, kt, n): return V(SB(u) + (kt * 3 + n) * 4, 4)
def Preg(u, n): return V((12 * u if u < 15 else 180) + 4 * n, 4)
def Oacc(sl, t, n): return A((sl % 2) * 48 + (t * 3 + n) * 4, 4)


def k1(cfg, name, end_label):
    st = Stamper(cfg.stamps)
    NFR = cfg.nfr
    pro = kernel_header(name)
    P = pro.append
    P(salu("s_cmp_ge_u32", None, S(2), 256)); P(raw(f"s_cbranch_scc1 {end_label}", 'branch'))
    P(raw("s_load_dwordx16 s[16:31], s[0:1], 0", 'smem', wr=[S(16, 16)]))
    if cfg.stamps:
        r = S(sSTAMP0, 2); st.n = 1
        P(raw(f"s_memrealtime {r}", 'smem', wr=[r]))
        r = S(sSTAMP0 + 2, 2); st.n = 2
        P(raw(f"s_memtime {r}", 'smem', wr=[r]))
    vl, vw, vg, vm, va, vb, vc, vd = [V(i) for i in range(1, 9)]
    P(valu("v_and_b32", vl, 63, V(0))); P(valu("v_lshrrev_b32", vw, 6, V(0)))
    P(valu("v_readfirstlane_b32", sWAVE, vw))
    P(valu("v_lshrrev_b32", vg, 4, vl)); P(valu("v_and_b32", vm, 15, vl))
    P(salu("s_and_b32", sT0, S(2), 7)); P(salu("s_lshr_b32", sT1, S(2), 3))
    P(salu("s_lshr_b32", sB, sT0, 2)); P(salu("s_lshl_b32", sB, sB, 3)); P(salu("s_lshr_b32", sT2, sT1, 2)); P(salu("s_add_u32", sB, sB, sT2))
    P(salu("s_and_b32", sH, sT0, 3)); P(salu("s_lshl_b32", sH, sH, 2)); P(salu("s_and_b32", sT2, sT1, 3)); P(salu("s_add_u32", sH, sH, sT2))
    P(salu("s_lshl_b32", sM0K, sWAVE, 12))
    P(salu("s_mul_i32", sM0X, sWAVE, 3072)); P(salu("s_add_u32", sM0X, sM0X, 16384))
    P(salu("s_mov_b32", sC[0], hex(QSCALE))); P(salu("s_mov_b32", sC[1], hex(QSCALE)))
    P(valu("v_lshrrev_b32", va, 5, vl))
    P(valu("v_and_b32", vb, 1, vw)); P(valu("v_lshlrev_b32", vb, 3, vb))
    P(valu("v_and_b32", vc, 31, vl))
    for i in range(4):
        P(valu("v_lshlrev_b32", vd, 1, va)); P(valu("v_add_u32", vd, 2 * ((2 * i) & 3), vd)); P(valu("v_add_u32", vd, vd, vb))
        P(valu("v_xor_b32", vd, vd, vc)); P(valu("v_lshlrev_b32", vd, 4, vd))
        P(valu("v_lshl_add_u32", vWD[i], vw, 3, va))
        P(valu("v_lshlrev_b32", vWD[i], 13, vWD[i]))
        P(valu("v_add_u32", vWD[i], vWD[i], vd))
        P(valu("v_add_u32", vWD[i], 2 * i * 8192 - i * 1024, vWD[i]))
    P(valu("v_sub_u32", vd, 0, vg)); P(valu("v_xor_b32", vd, vd, vl)); P(valu("v_and_b32", vd, 3, vd)); P(valu("v_lshlrev_b32", vd, 4, vd))
    P(valu("v_mul_u32_u24", vXD[0], 48, vw)); P(valu("v_lshrrev_b32", vXD[1], 2, vl)); P(valu("v_add_u32", vXD[0], vXD[0], vXD[1]))
    P(valu("v_mul_u32_u24", vXD[0], 896, vXD[0])); P(valu("v_add_u32", vXD[0], vXD[0], vd))
    P(valu("v_add_u32", vXD[1], 16 * 896 - 1024, vXD[0])); P(valu("v_add_u32", vXD[2], 2 * (16 * 896 - 1024), vXD[0]))
    P(wait_all(vm=False))
    P(salu("s_mul_i32", sT0, sB, SQ * D * 2)); srd(pro, rX, P_X, sT0, 0, SQ * D * 2)
    P(salu("s_lshl_b32", sT0, sH, 9)); srd(pro, rWQ, P_WQ, sT0, 0, 447 * 8192 + 512)
    P(salu("s_lshl_b32", sT0, sB, 4)); P(salu("s_add_u32", sT0, sT0, sH)); P(salu("s_lshl_b32", sT1, sT0, 18)); P(salu("s_lshr_b32", sT2, sT0, 14))
    srd(pro, rK, P_K, sT1, sT2, 262144); srd(pro, rV, P_V, sT1, sT2, 262144)

    def dma_q(s):
        ops = [salu("s_add_u32", "m0", sM0K, QB[s % 3]), salu("s_mov_b32", sSOFF, s * 32 * 8192)]
        ld = [buf_load_lds(vWD[i], rWQ, sSOFF, i * 1024) for i in range(4)]
        ops += ld
        ops += [salu("s_add_u32", "m0", sM0X, QB[s % 3]), salu("s_mov_b32", sSOFF2, s * 64)]
        l2 = [buf_load_lds(vXD[i], rX, sSOFF2, i * 1024) for i in range(3)]
        ops += l2
        return ops, [o.tok for o in ld + l2]
    def slot_of(kv): return RING[kv % 10]
    def dma_kv(kv):
        sl = slot_of(kv)
        if kv < 16:
            ops = [salu("s_add_u32", "m0", sM0K, sl * 16384), salu("s_mov_b32", sSOFF, kv * 16384)]
            ld = [buf_load_lds(vKD[i], rK, sSOFF, i * 1024, cfg.kv_flags) for i in range(4)]
        else:
            s_, kb = divmod(kv - 16, 4)
            ops = [salu("s_add_u32", "m0", sM0K, sl * 16384), salu("s_mov_b32", sSOFF, kb * 65536 + s_ * 128)]
            ld = [buf_load_lds(vVD[i], rV, sSOFF, i * 1024, cfg.kv_flags) for i in range(4)]
        return ops + ld, [o.tok for o in ld]

    dtok = {}
    for s in range(3):
        ops, dtok[s] = dma_q(s); pro += ops
    for i in range(4):
        P(valu("v_add_u32", vd, 2 * i, va)); P(valu("v_add_u32", vd, vd, vb)); P(valu("v_xor_b32", vd, vd, vc)); P(valu("v_lshlrev_b32", vd, 4, vd))
        P(valu("v_lshl_add_u32", vKD[i], va, 9, vd)); P(valu("v_lshl_add_u32", vKD[i], vw, 12, vKD[i]))
    for kv in range(4):
        ops, dtok[14 + kv] = dma_kv(kv); pro += ops
    P(valu("v_lshlrev_b32", vd, 1, vg)); P(valu("v_and_b32", vc, 7, vl)); P(valu("v_xor_b32", vd, vd, vc)); P(valu("v_lshlrev_b32", vd, 4, vd))
    P(valu("v_lshrrev_b32", vc, 3, vl)); P(valu("v_lshl_add_u32", vc, vw, 5, vc)); P(valu("v_lshl_add_u32", vVD[0], vc, 9, vd))
    for i in range(1, 4): P(valu("v_add_u32", vVD[i], i * (4096 - 1024), vVD[0]))
    r4, cc = V(9), V(10)
    P(valu("v_lshrrev_b32", r4, 2, vm)); P(valu("v_and_b32", cc, 3, vm))
    P(valu("v_and_b32", va, 1, vg)); P(valu("v_lshl_add_u32", va, va, 2, r4)); P(valu("v_lshlrev_b32", va, 1, va))
    P(valu("v_lshrrev_b32", vb, 1, cc))
    P(valu("v_lshl_add_u32", vc, vg, 3, r4)); P(valu("v_lshlrev_b32", vc, 9, vc))
    P(valu("v_and_b32", vd, 1, cc)); P(valu("v_lshl_add_u32", vc, vd, 3, vc))
    for tb in range(8):
        P(valu("v_add_u32", vd, 2 * tb, vb)); P(valu("v_xor_b32", vd, vd, va)); P(valu("v_lshl_add_u32", vWR[tb], vd, 4, vc))
    P(valu("v_sub_u32", vd, 0, r4)); P(valu("v_and_b32", vd, 3, vd)); P(valu("v_xor_b32", vd, vd, vg)); P(valu("v_lshlrev_b32", vd, 4, vd))
    P(valu("v_lshl_add_u32", vXR, vm, 6, vd)); P(valu("v_add_u32", vXR, sM0X, vXR))
    P(valu("v_and_b32", va, 1, vg)); P(valu("v_lshlrev_b32", va, 1, va)); P(valu("v_lshrrev_b32", vd, 1, vg)); P(valu("v_or_b32", va, va, vd))
    for sb in range(4):
        P(valu("v_add_u32", vd, 4 * sb, va)); P(valu("v_xor_b32", vd, vd, vm)); P(valu("v_lshlrev_b32", vd, 4, vd))
        P(valu("v_lshl_add_u32", vKR[sb], vm, 9, vd))
    P(valu("v_lshrrev_b32", va, 1, r4)); P(valu("v_lshl_add_u32", va, vg, 1, va)); P(valu("v_and_b32", va, 3, va)); P(valu("v_lshlrev_b32", va, 1, va))
    P(valu("v_lshl_add_u32", vc, vg, 2, r4)); P(valu("v_lshlrev_b32", vc, 7, vc)); P(valu("v_and_b32", vd, 1, cc)); P(valu("v_lshl_add_u32", vc, vd, 3, vc))
    for t in range(4):
        P(valu("v_add_u32", vd, 2 * t, vb)); P(valu("v_xor_b32", vd, vd, va)); P(valu("v_lshl_add_u32", vd, vd, 4, vc))
        P(valu("v_accvgpr_write_b32", aVR[t], vd))
    P(salu("s_mul_i32", sT0, sWAVE, 128 * 3072)); P(valu("v_lshlrev_b32", vOST, 4, vl)); P(valu("v_accvgpr_write_b32", aWST, vOST))
    P(valu("v_add_u32", vOST, sT0, vOST))
    P(salu("s_mul_i32", sT0, sB, 4 * 128 * 3072)); P(salu("s_mul_i32", sT1, sH, 8 * 3072)); P(salu("s_add_u32", sT0, sT0, sT1))
    srd(pro, rOF, P_WS, sT0, 0, 3 * 128 * 3072 + 8 * 3072)
    srd(pro, rWO, P_WO, None, None, 4096 * 896)
    srd(pro, rWF, P_WS, WS_WF, 0, WS_WF_BYTES)
    srd(pro, rST, P_WS, WS_STAMP, 0, 64 << 20)
    for i in range(4): P(valu("v_mov_b32", vd, "0x3f803f80") if i == 0 else comment("")); P(valu("v_accvgpr_write_b32", aONE[i], vd))
    vWoA, vWoB = vT3[0], vT3[1]
    P(valu("v_mul_u32_u24", vWoA, 4 * 896, vg)); P(valu("v_lshl_add_u32", vWoA, vm, 1, vWoA)); P(valu("v_add_u32", vWoB, 16 * 896, vWoA))
    sNT = [S(90 + i) for i in range(4)]
    wo_tok = []
    P(salu("s_lshr_b32", sT0, S(2), 1))
    P(salu("s_and_b32", sT1, S(2), 1)); P(salu("s_mul_i32", sT1, sT1, 14))
    for i in range(4):
        P(salu("s_lshl_b32", sT2, sWAVE, 2)); P(salu("s_add_u32", sT2, sT2, i)); P(salu("s_min_u32", sT2, sT2, 13)); P(salu("s_add_u32", sT2, sT2, sT1))
        P(salu("s_mul_i32", sT3, sT0, 32 * 896)); P(salu("s_lshl_b32", sSOFF, sT2, 5)); P(salu("s_add_u32", sSOFF, sSOFF, sT3))
        for j in range(8):
            ld = buf_load("buffer_load_ushort", aWT[8 * i + j], vWoB if j >= 4 else vWoA, rWO, sSOFF, (j & 3) * 896)
            P(ld); wo_tok.append(ld.tok)
        P(salu("s_mul_i32", sT3, sT2, 37)); P(salu("s_lshr_b32", sT3, sT3, 8))
        P(salu("s_mul_i32", sNT[i], sT3, 127 * 7))
        P(salu("s_add_u32", sNT[i], sNT[i], sT2)); P(salu("s_mul_i32", sT3, sT0, 7)); P(salu("s_add_u32", sNT[i], sNT[i], sT3))
        P(salu("s_lshl_b32", sNT[i], sNT[i], 10))

    T = Timeline()
    fcount = [0]
    def fr(f): return aFR[(f % NFR) * 4:(f % NFR) * 4 + 4]
    AH0, AH1 = 4, NFR - 1
    def rpos(base, i):
        p0 = -3 * AH0; p1 = 45 - 3 * AH1
        return base + p0 + int(round(i * (p1 - p0) / 15.0))
    BARPOS = 45 - 3 * AH1 + 7

    units = []
    region = [0]
    def set_region(pos, regn, adr):
        d = regn - region[0]
        if d:
            for i in range(4): T.at(pos, valu("v_add_u32", adr[i], hex((d * 65536) & 0xffffffff), adr[i]))
            region[0] = regn

    plan = []
    def add_unit(kind, idx, mf, pre_extra=()):
        for e in pre_extra: T.add(e)
        base = len(T.m)
        for m in mf: T.add(m)
        plan.append(dict(kind=kind, idx=idx, base=base, mf=mf))

    for s in range(14):
        mf = []
        for t in range(16):
            f = 16 * s + t
            for n in range(3):
                mf.append(mfma16(Qacc(t, n), fr(f), aX[(s % 2) * 12 + 4 * n:(s % 2) * 12 + 4 * n + 4], Qacc(t, n) if s else 0))
        add_unit('q', s, mf)
    for u in range(16):
        mf = []
        for s in range(8):
            for kt in range(2):
                f = 16 * (14 + u) + 2 * s + kt
                for n in range(3):
                    c = Sreg(u, kt, n) if s else (0 if u < 2 else vNEGM[4 * n:4 * n + 4])
                    mf.append(mfma16(Sreg(u, kt, n), fr(f), Qf(s, n), c))
        extra = []
        if u >= 2:
            extra = [mfma16(aL[4 * n:4 * n + 4], aONE, Preg(u - 2, n), aL[4 * n:4 * n + 4] if u > 2 else 0) for n in range(3)]
        add_unit('k', u, mf, extra)
    qk_end = len(T.m)
    for n in range(3): T.add(mfma16(aL[4 * n:4 * n + 4], aONE, Preg(14, n), aL[4 * n:4 * n + 4]))
    l15_pos = len(T.m)
    for n in range(3): T.add(mfma16(aL[4 * n:4 * n + 4], aONE, Preg(15, n), aL[4 * n:4 * n + 4]))
    for sl in range(4):
        for kb in range(4):
            mf = []
            for ks in range(4):
                for t in range(4):
                    f = 16 * (30 + 4 * sl + kb) + 4 * ks + t
                    for n in range(3):
                        mf.append(mfma16(Oacc(sl, t, n), fr(f), Preg(4 * kb + ks, n), Oacc(sl, t, n) if (kb or ks) else 0))
            add_unit('v', 4 * sl + kb, mf)
    end_pos = len(T.m)

    last_reads = []
    for ui, un in enumerate(plan):
        base = un['base']; kind = un['kind']; idx = un['idx']
        if ui == 0:
            bpos = 0
        else:
            bpos = plan[ui - 1]['base'] + BARPOS
        T.at(bpos, barrier(needs=list(dtok[ui]) + last_reads))
        if cfg.stamps and ui == 0:
            T.at(bpos, *st.stamp())
        dm = []
        if ui >= 1:
            prev = ui - 1
            if prev + 3 < 14:
                ops, dtok[prev + 3] = dma_q(prev + 3); dm += ops
            elif prev == 11:
                for kv in (4, 5):
                    ops, dtok[14 + kv] = dma_kv(kv); dm += ops
            elif prev == 12:
                ops, dtok[14 + 6] = dma_kv(6); dm += ops
            elif prev == 13:
                for kv in (7, 8, 9):
                    ops, dtok[14 + kv] = dma_kv(kv); dm += ops
            else:
                kv = prev - 14 + 10
                if kv < 32:
                    ops, dtok[14 + kv] = dma_kv(kv); dm += ops
        rd_list = []
        first = rpos(base, 0) if ui else 0
        first = max(first, bpos)
        if kind == 'q':
            xt = []
            for n in range(3):
                r = ds_read("ds_read_b128", aX[(idx % 2) * 12 + 4 * n:(idx % 2) * 12 + 4 * n + 4], vXR, QB[idx % 3] + n * 1024)
                T.at(first, r); xt.append(r.tok); rd_list.append(r.tok)
            for n in range(3): un['mf'][n].needs.append(xt[n])
        else:
            kv = ui - 14
            slot = slot_of(kv)
            if kind == 'v' and idx == 0:
                for t in range(4): T.at(first, valu("v_accvgpr_read_b32", vKR[t], aVR[t]))
                region[0] = 0
            set_region(first, slot // 4, vKR)
            sbase = (slot % 4) * 16384
        for i in range(16):
            f = 16 * ui + i
            pos = max(rpos(base, i), first) if ui else max(0, rpos(base, i))
            if kind == 'q':
                a_, tb = divmod(i, 8)
                rs = [ds_read("ds_read_b64_tr_b16", fr(f)[2 * hh:2 * hh + 2], vWR[tb], QB[idx % 3] + a_ * 256 + hh * 2048) for hh in range(2)]
            elif kind == 'k':
                s_, kt = divmod(i, 2); a_, sb = divmod(s_, 4)
                rs = [ds_read("ds_read_b128", fr(f), vKR[sb], sbase + kt * 8192 + a_ * 256)]
            else:
                ks, t = divmod(i, 4)
                rs = [ds_read("ds_read_b64_tr_b16", fr(f)[2 * hh:2 * hh + 2], vKR[t], sbase + ks * 4096 + hh * 2048) for hh in range(2)]
            T.at(pos, *rs)
            for r in rs:
                un['mf'][3 * i].needs.append(r.tok); rd_list.append(r.tok)
        last_reads = rd_list[-2:]
        if dm:
            T.spread(dm, bpos, bpos + 30, cap=3)

    wops = []
    for i in range(4):
        tq = vTMP[8 * (i % 2):8 * (i % 2) + 4]; t2 = vTMP[16];
        for k_ in range(4):
            wops.append(valu("v_accvgpr_read_b32", tq[k_], aWT[8 * i + 2 * k_], needs=wo_tok[8 * i:8 * i + 8]))
            wops.append(valu("v_accvgpr_read_b32", t2, aWT[8 * i + 2 * k_ + 1]))
            wops.append(valu("v_lshl_or_b32", tq[k_], t2, 16, tq[k_]))
        wops.append(valu("v_accvgpr_read_b32", vTMP[17], aWST))
        wops.append(buf_store("buffer_store_dwordx4", tq, vTMP[17], rWF, sNT[i], 0))
    T.spread(wops, plan[6]['base'], plan[8]['base'])

    qpos = plan[14]['base']
    conv = []
    if cfg.stamps: conv += st.stamp()
    for tp in range(8):
        for n in range(3):
            a4, b4 = Qacc(2 * tp, n), Qacc(2 * tp + 1, n)
            tq = vTMP[4 * ((tp * 3 + n) % 4):4 * ((tp * 3 + n) % 4) + 4]
            for r in (a4, b4):
                conv.append(valu("v_pk_mul_f32", r[0:2], r[0:2], sC)); conv.append(valu("v_pk_mul_f32", r[2:4], r[2:4], sC))
            conv.append(valu("v_cvt_pk_bf16_f32", tq[0], a4[0], a4[1])); conv.append(valu("v_cvt_pk_bf16_f32", tq[2], b4[0], b4[1]))
            conv.append(valu("v_cvt_pk_bf16_f32", tq[1], a4[2], a4[3])); conv.append(valu("v_cvt_pk_bf16_f32", tq[3], b4[2], b4[3]))
            conv.append(('sw', tq, Qf(tp, n)))
    conv2 = []; pend = None
    for c in conv:
        if isinstance(c, tuple):
            if pend: conv2 += pend
            tq, qf = c[1], c[2]
            pend = [valu("v_permlane16_swap_b32", tq[0], tq[2]), valu("v_permlane16_swap_b32", tq[1], tq[3])] + \
                   [valu("v_accvgpr_write_b32", qf[k_], tq[k_]) for k_ in range(4)]
        else: conv2.append(c)
    conv2 += pend
    if cfg.dump == 'q':
        conv2.append(salu("s_lshl_b32", sT0, S(2), 2)); conv2.append(salu("s_add_u32", sT0, sT0, sWAVE)); conv2.append(salu("s_mul_i32", sT0, sT0, 24 * 1024))
        conv2.append(salu("s_add_u32", sT0, sT0, WS_DUMP - WS_STAMP))
        conv2.append(valu("v_accvgpr_read_b32", vTMP[17], aWST))
        for k_ in range(24):
            conv2.append(buf_store("buffer_store_dwordx4", A(4 * k_, 4), vTMP[17], rST, sT0, 0)); conv2.append(salu("s_add_u32", sT0, sT0, 1024))
    if cfg.stamps: conv2 += st.stamp()
    T.at(qpos, *conv2)

    def softmax_ops(u):
        ops = []
        if u == 0:
            ta, tb_ = vT3[0], vT3[1]
            for n in range(3):
                a4, b4 = Sreg(0, 0, n), Sreg(0, 1, n)
                ops.append(valu("v_max3_f32", ta, a4[0], a4[1], a4[2])); ops.append(valu("v_max3_f32", ta, ta, a4[3], b4[0]))
                ops.append(valu("v_max3_f32", ta, ta, b4[1], b4[2])); ops.append(valu("v_max_f32", ta, ta, b4[3]))
                ops.append(valu("v_mov_b32", tb_, ta)); ops.append(valu("v_permlane16_swap_b32", ta, tb_)); ops.append(valu("v_max_f32", ta, ta, tb_))
                ops.append(valu("v_mov_b32", tb_, ta)); ops.append(valu("v_permlane32_swap_b32", ta, tb_)); ops.append(valu("v_max_f32", ta, ta, tb_))
                for k_ in range(4): ops.append(valu("v_sub_f32", vNEGM[4 * n + k_], 0, ta))
        for n in range(3):
            for kt in range(2):
                s4 = Sreg(u, kt, n); p = Preg(u, n)
                if u < 2:
                    for k_ in range(4): ops.append(valu("v_add_f32", s4[k_], s4[k_], vNEGM[4 * n]))
                for k_ in range(4): ops.append(valu("v_exp_f32", s4[k_], s4[k_]))
                ops.append(('cvt', [valu("v_cvt_pk_bf16_f32", p[2 * kt], s4[0], s4[1]), valu("v_cvt_pk_bf16_f32", p[2 * kt + 1], s4[2], s4[3])]))
        o2 = []; pend = None
        for o in ops:
            if isinstance(o, tuple):
                pend = o[1]
            else:
                o2.append(o)
                if pend and o.kind == 'trans': o2 += pend; pend = None
        if pend: o2 += pend
        return o2
    for u in range(16):
        ops = softmax_ops(u)
        if u < 15:
            b0 = plan[14 + u + 1]['base']
            T.spread(ops, b0 + 4, b0 + 47, cap=2)
        else:
            T.at(l15_pos, *ops)
    pv0 = plan[30]['base']
    vR = [vNEGM[4 * n:4 * n + 2] for n in range(3)]
    lops = []
    for n in range(3): lops.append(valu("v_accvgpr_read_b32", vR[n][0], aL[4 * n]))
    for n in range(3): lops.append(valu("v_rcp_f32", vR[n][0], vR[n][0]))
    if cfg.dump == 'p':
        lops.append(salu("s_lshl_b32", sT0, S(2), 2)); lops.append(salu("s_add_u32", sT0, sT0, sWAVE)); lops.append(salu("s_mul_i32", sT0, sT0, 52 * 1024))
        lops.append(salu("s_add_u32", sT0, sT0, WS_DUMP - WS_STAMP))
        lops.append(valu("v_accvgpr_read_b32", vT3[2], aWST))
        for k_ in range(48):
            lops.append(buf_store("buffer_store_dwordx4", V(4 * k_, 4), vT3[2], rST, sT0, 0)); lops.append(salu("s_add_u32", sT0, sT0, 1024))
        for k_ in range(3):
            lops.append(buf_store("buffer_store_dwordx4", aL[4 * k_:4 * k_ + 4], vT3[2], rST, sT0, 0)); lops.append(salu("s_add_u32", sT0, sT0, 1024))
    if cfg.stamps: lops += st.stamp()
    T.at(pv0, *lops)

    def epi_ops(sl):
        ops = []
        k_ = 0
        for tt in range(2):
            ops.append(salu("s_mov_b32", sSOFF2, (2 * sl + tt) * 3072))
            for n in range(3):
                tb_ = V(192 + 12 * (k_ % 3), 12); k_ += 1
                a4, b4 = Oacc(sl, 2 * tt, n), Oacc(sl, 2 * tt + 1, n)
                for i in range(4): ops.append(valu("v_accvgpr_read_b32", tb_[i], a4[i]))
                for i in range(4): ops.append(valu("v_accvgpr_read_b32", tb_[4 + i], b4[i]))
                for i in range(8): ops.append(valu("v_mul_f32", tb_[i], tb_[i], vR[n][0]))
                for i in range(4): ops.append(valu("v_cvt_pk_bf16_f32", tb_[8 + i], tb_[2 * i], tb_[2 * i + 1]))
                ops.append(buf_store("buffer_store_dwordx4", tb_[8:12], vOST, rOF, sSOFF2, n * 1024))
        return ops
    for sl in range(4):
        ops = epi_ops(sl)
        if sl < 3:
            b0 = plan[30 + 4 * (sl + 1)]['base']
            T.spread(ops, b0 + 4, b0 + 150, cap=2)
        else:
            T.at(end_pos, *ops)
    tail = []
    if cfg.stamps:
        tail += st.stamp(); tail.append(wait_all()); tail += st.stamp(); tail += st.flush(V(0, 4), 0)
    return pro + T.flatten() + tail


def k2(cfg, name, end_label):
    st = Stamper(cfg.stamps)
    o = kernel_header(name); P = o.append
    P(salu("s_cmp_ge_u32", None, S(2), 256)); P(raw(f"s_cbranch_scc1 {end_label}", 'branch'))
    P(raw("s_load_dwordx16 s[16:31], s[0:1], 0", 'smem', wr=[S(16, 16)]))
    if cfg.stamps:
        r = S(sSTAMP0, 2); P(raw(f"s_memrealtime {r}", 'smem', wr=[r]))
        r = S(sSTAMP0 + 2, 2); P(raw(f"s_memtime {r}", 'smem', wr=[r])); st.n = 2
    vl, vw, vg, vm, va, vb = [V(i) for i in range(1, 7)]
    vOA, vWA, vWB, vLW, vLR, vOUT = [V(i) for i in range(8, 14)]
    sRB, sCS = S(68), S(69)
    P(valu("v_and_b32", vl, 63, V(0))); P(valu("v_lshrrev_b32", vw, 6, V(0)))
    P(valu("v_readfirstlane_b32", sWAVE, vw))
    P(valu("v_lshrrev_b32", vg, 4, vl)); P(valu("v_and_b32", vm, 15, vl))
    P(salu("s_and_b32", sT0, S(2), 7)); P(salu("s_lshr_b32", sT1, S(2), 3))
    P(salu("s_lshl_b32", sB, sT0, 1)); P(salu("s_lshr_b32", sT2, sT1, 4)); P(salu("s_add_u32", sB, sB, sT2))
    P(salu("s_lshr_b32", sRB, sT1, 2)); P(salu("s_and_b32", sRB, sRB, 3)); P(salu("s_and_b32", sCS, sT1, 3))
    P(valu("v_lshlrev_b32", vOA, 4, vl)); P(valu("v_mov_b32", vWA, vOA)); P(valu("v_add_u32", vWB, 4096, vOA))
    P(wait_all(vm=False))
    P(salu("s_lshl_b32", sT0, sB, 2)); P(salu("s_add_u32", sT0, sT0, sRB)); P(salu("s_lshl_b32", sT0, sT0, 7))
    P(salu("s_lshl_b32", sT1, sWAVE, 5)); P(salu("s_add_u32", sT0, sT0, sT1)); P(salu("s_mul_i32", sT0, sT0, 3072))
    srd(o, rOF, P_WS, sT0, 0, 32 * 3072)
    P(salu("s_lshl_b32", sT0, sCS, 7)); P(salu("s_add_u32", sT0, sT0, sT1)); P(salu("s_mul_i32", sT0, sT0, 7168)); P(salu("s_add_u32", sT0, sT0, WS_WF))
    srd(o, rWF, P_WS, sT0, 0, 32 * 7168)
    P(salu("s_mul_i32", sT0, sB, 192 * 896)); P(salu("s_mul_i32", sT1, sRB, 48 * 896)); P(salu("s_add_u32", sT0, sT0, sT1))
    P(salu("s_mul_i32", sT1, sCS, 224)); P(salu("s_add_u32", sT0, sT0, sT1))
    srd(o, rOUT, P_OUT, sT0, 0, 47 * 896 + 224)
    srd(o, rST, P_WS, WS_STAMP, 0, 64 << 20)
    NB = 6
    def buf(k): return A((k % NB) * 40, 40)
    def acc(nt, n): return V(16 + (nt * 3 + n) * 4, 4)
    toks = {}
    def loads(k):
        ops = [salu("s_mov_b32", sSOFF, k * 3072), salu("s_mov_b32", sSOFF2, k * 7168)]
        b = buf(k); tk = []
        for n in range(3):
            l = buf_load("buffer_load_dwordx4", b[4 * n:4 * n + 4], vOA, rOF, sSOFF, n * 1024); ops.append(l); tk.append(l.tok)
        for nt in range(7):
            l = buf_load("buffer_load_dwordx4", b[12 + 4 * nt:16 + 4 * nt], vWB if nt >= 4 else vWA, rWF, sSOFF2, (nt % 4) * 1024); ops.append(l); tk.append(l.tok)
        toks[k] = tk
        return ops
    for k in range(NB): o += loads(k)
    T = Timeline()
    for k in range(32):
        b = buf(k)
        base = len(T.m)
        for nt in range(7):
            for n in range(3):
                m = mfma16(acc(nt, n), b[12 + 4 * nt:16 + 4 * nt], b[4 * n:4 * n + 4], acc(nt, n) if k else 0)
                m.needs += toks[k][:3] + [toks[k][3 + nt]] if n == 0 else []
                T.add(m)
        if k + NB < 32:
            T.spread(loads(k + NB), base + 21, base + 40, cap=2)
    o += T.flatten()
    if cfg.stamps: o += st.stamp()
    P(salu("s_mul_i32", sT0, sWAVE, 21504)); P(valu("v_add_u32", vLW, sT0, vOA))
    wt = []
    for tl in range(21):
        w_ = ds_write("ds_write_b128", vLW, V(16 + 4 * tl, 4), tl * 1024); P(w_); wt.append(w_.tok)
    P(barrier(needs=wt[-1:]))
    P(valu("v_mul_u32_u24", vOUT, 896, vm)); P(valu("v_lshl_add_u32", vOUT, vg, 3, vOUT))
    for i in range(6):
        P(salu("s_add_u32", sT0, sWAVE, 4 * i)); P(salu("s_min_u32", sT0, sT0, 20))
        P(salu("s_lshl_b32", sT1, sT0, 10)); P(valu("v_add_u32", vLR, sT1, vOA))
        rd = []
        for w_ in range(4):
            r = ds_read("ds_read_b128", V(104 + 16 * (i % 2) + 4 * w_, 4), vLR, w_ * 21504); P(r); rd.append(r.tok)
        P(salu("s_mul_i32", sT1, sT0, 86)); P(salu("s_lshr_b32", sT1, sT1, 8))
        P(salu("s_mul_i32", sT2, sT1, 3)); P(salu("s_sub_u32", sT2, sT0, sT2))
        P(salu("s_mul_i32", sT2, sT2, 16 * 896)); P(salu("s_lshl_b32", sT1, sT1, 5)); P(salu("s_add_u32", sSOFF, sT1, sT2))
        x = [V(104 + 16 * (i % 2) + 4 * w_, 4) for w_ in range(4)]
        for k_ in range(4):
            P(valu("v_add_f32", x[0][k_], x[0][k_], x[1][k_], needs=rd)); P(valu("v_add_f32", x[2][k_], x[2][k_], x[3][k_]))
        for k_ in range(4): P(valu("v_add_f32", x[0][k_], x[0][k_], x[2][k_]))
        pk = V(140 + 2 * (i % 2), 2)
        P(valu("v_cvt_pk_bf16_f32", pk[0], x[0][0], x[0][1])); P(valu("v_cvt_pk_bf16_f32", pk[1], x[0][2], x[0][3]))
        P(buf_store("buffer_store_dwordx2", pk, vOUT, rOUT, sSOFF, 0))
    if cfg.stamps:
        o += [wait_all()] + st.stamp() + st.flush(V(0, 4), 1)
    return o


HEADER = open("cdna_kernels/" + NAME + ".s.ref").read().split("; Override launch")[0]


def build(cfg, path):
    L = [HEADER.rstrip("\n")]
    L.append("; @launch kernel=mha_attn_kernel grid=(256,1,1) block=(256,1,1) lds=163840")
    L.append("; @launch kernel=mha_oproj_kernel grid=(256,1,1) block=(256,1,1) lds=86016")
    L.append('.amdgcn_target "amdgcn-amd-amdhsa--gfx950"')
    L.append(".text")
    L += render(k1(cfg, "mha_attn_kernel", "L_end1") + [label("L_end1"), raw("s_endpgm")])
    L += render(k2(cfg, "mha_oproj_kernel", "L_end2") + [label("L_end2"), raw("s_endpgm")])
    L.append(kd("mha_attn_kernel"))
    L.append(kd("mha_oproj_kernel"))
    open(path, "w").write("\n".join(L) + "\n")


if __name__ == "__main__":
    import argparse
    ap = argparse.ArgumentParser()
    ap.add_argument("-o", default="cdna_kernels/" + NAME + ".s")
    ap.add_argument("--stamps", action="store_true")
    ap.add_argument("--dump", default=None)
    a = ap.parse_args()
    cfg = Cfg(); cfg.stamps = a.stamps; cfg.dump = a.dump
    build(cfg, a.o)
```

```python
import re


def regs(kind, start, n=1):
    return {(kind, i) for i in range(start, start + n)}


def rt(kind, start, n=1):
    return f"{kind}{start}" if n == 1 else f"{kind}[{start}:{start + n - 1}]"


class Reg:
    def __init__(self, kind, start, n=1):
        self.k, self.i, self.n = kind, start, n
    def __str__(self): return rt(self.k, self.i, self.n)
    def set(self): return regs(self.k, self.i, self.n)
    def __getitem__(self, j):
        if isinstance(j, slice):
            a, b = j.start or 0, j.stop if j.stop is not None else self.n
            assert 0 <= a < b <= self.n
            return Reg(self.k, self.i + a, b - a)
        assert 0 <= j < self.n
        return Reg(self.k, self.i + j, 1)


def V(i, n=1): return Reg('v', i, n)
def A(i, n=1): return Reg('a', i, n)
def S(i, n=1): return Reg('s', i, n)


def rset(x):
    if isinstance(x, Reg): return x.set()
    if isinstance(x, str) and x in ('vcc', 'exec', 'm0', 'scc'): return {(x, 0)}
    return set()


class Ins:
    __slots__ = ("text", "kind", "wr", "rd", "needs", "tok", "cost", "srcc", "passes", "sdata", "ab", "expect")
    def __init__(self, text, kind, wr=(), rd=(), needs=(), cost=1):
        self.text, self.kind = text, kind
        self.wr, self.rd = set(wr), set(rd)
        self.needs = list(needs)
        self.tok = None
        self.cost = cost
        self.srcc = set(); self.passes = 0; self.sdata = set(); self.ab = set(); self.expect = None


class Tok:
    __slots__ = ("cls", "seq")
    def __init__(self, cls): self.cls, self.seq = cls, None


TRANS = ("v_exp_f32", "v_log_f32", "v_rcp_f32", "v_rsq_f32", "v_sqrt_f32")


def _u(*xs):
    s = set()
    for x in xs: s |= rset(x)
    return s


def valu(op, dst, *srcs, mod="", needs=(), extra_wr=(), extra_rd=()):
    kind = 'trans' if op in TRANS else 'valu'
    if op.startswith("v_permlane"): kind = 'permlane'
    if op.startswith("v_readfirstlane") or op.startswith("v_readlane"): kind = 'readlane'
    text = f"{op} " + ", ".join(str(x) for x in (dst,) + srcs) + (" " + mod if mod else "")
    wr = rset(dst) | _u(*extra_wr); rd = _u(*srcs) | _u(*extra_rd)
    if kind == 'permlane': wr |= rd; rd = set(wr)
    if op in ("v_fmac_f32",): rd |= rset(dst)
    return Ins(text, kind, wr, rd, needs, cost=2 if kind == 'trans' else 1)


def salu(op, dst, *srcs, needs=()):
    text = f"{op} " + ", ".join(str(x) for x in ((dst,) if dst is not None else ()) + srcs)
    wr = rset(dst) | {('scc', 0)}
    return Ins(text, 'salu', wr, _u(*srcs), needs)


def raw(text, kind='other', wr=(), rd=(), needs=(), cost=1):
    return Ins(text, kind, _u(*wr), _u(*rd), needs, cost)


def mfma16(d, a, b, c, needs=()):
    i = Ins(f"v_mfma_f32_16x16x32_bf16 {d}, {a}, {b}, {c}", 'mfma', d.set(), _u(a, b, c), needs, cost=2)
    i.srcc = rset(c); i.passes = 4; i.ab = _u(a, b)
    return i


def mfma32(d, a, b, c, needs=()):
    i = Ins(f"v_mfma_f32_32x32x16_bf16 {d}, {a}, {b}, {c}", 'mfma', d.set(), _u(a, b, c), needs, cost=2)
    i.srcc = rset(c); i.passes = 8; i.ab = _u(a, b)
    return i


def ds_read(op, dst, addr, off=0, needs=()):
    assert 0 <= off < 65536, off
    i = Ins(f"{op} {dst}, {addr}" + (f" offset:{off}" if off else ""), 'ds', dst.set(), addr.set(), needs)
    i.tok = Tok('lgkm')
    return i


def ds_write(op, addr, data, off=0, needs=()):
    assert 0 <= off < 65536, off
    i = Ins(f"{op} {addr}, {data}" + (f" offset:{off}" if off else ""), 'ds', (), addr.set() | data.set(), needs)
    i.tok = Tok('lgkm')
    return i


def buf_load(op, dst, voff, srd, soff=0, off=0, flags="", needs=()):
    assert 0 <= off < 4096, off
    t = f"{op} {dst}, {voff}, {srd}, {soff} offen" + (f" offset:{off}" if off else "") + (" " + flags if flags else "")
    i = Ins(t, 'vmem', dst.set(), _u(voff, srd, soff), needs)
    i.tok = Tok('vm')
    return i


def buf_load_lds(voff, srd, soff=0, off=0, flags="", needs=()):
    assert 0 <= off < 4096, off
    t = f"buffer_load_dwordx4 {voff}, {srd}, {soff} offen" + (f" offset:{off}" if off else "") + (" " + flags if flags else "") + " lds"
    i = Ins(t, 'vmemlds', (), _u(voff, srd, soff, 'm0'), needs)
    i.tok = Tok('vm')
    return i


def buf_store(op, data, voff, srd, soff=0, off=0, flags="", needs=()):
    assert 0 <= off < 4096, off
    t = f"{op} {data}, {voff}, {srd}, {soff} offen" + (f" offset:{off}" if off else "") + (" " + flags if flags else "")
    i = Ins(t, 'vmem', (), _u(data, voff, srd, soff), needs)
    if data.n >= 3: i.sdata = data.set()
    i.tok = Tok('vm')
    return i


def wait_all(vm=True, lgkm=True):
    i = Ins("s_waitcnt" + (" vmcnt(0)" if vm else "") + (" lgkmcnt(0)" if lgkm else ""), 'drain')
    i.sdata = (vm, lgkm)
    return i


def barrier(needs=()):
    return Ins("s_barrier", 'barrier', needs=needs)


def label(name):
    return Ins(f"{name}:", 'label', cost=0)


def comment(t):
    return Ins(f"; {t}", 'comment', cost=0)


def nop(n):
    return Ins(f"s_nop {n}", 'nop')


VALU_KINDS = ('valu', 'trans', 'permlane', 'readlane')


def resolve(stream):
    out = []
    issued = {'vm': 0, 'lgkm': 0}
    done = {'vm': 0, 'lgkm': 0}
    maxc = {'vm': 62, 'lgkm': 14}
    for ins in stream:
        need = {}
        for t in ins.needs:
            assert t.seq is not None, f"token consumed before issue: {ins.text}"
            if t.seq >= done[t.cls]:
                need[t.cls] = max(need.get(t.cls, -1), t.seq)
        if need:
            parts = []
            for cls, seq in need.items():
                n = issued[cls] - 1 - seq
                n = min(n, maxc[cls])
                parts.append(f"{'vmcnt' if cls == 'vm' else 'lgkmcnt'}({n})")
                done[cls] = max(done[cls], issued[cls] - n)
            out.append(Ins("s_waitcnt " + " ".join(sorted(parts, reverse=True)), 'wait'))
        if ins.kind == 'waitpt': continue
        if ins.kind == 'drain':
            if ins.sdata[0]: done['vm'] = issued['vm']
            if ins.sdata[1]: done['lgkm'] = issued['lgkm']
            ins2 = Ins(ins.text, 'wait'); out.append(ins2); continue
        req = hazard_need(out, ins)
        while req > 0:
            n = min(req, 16)
            out.append(Ins(f"s_nop {n - 1}", 'nop')); req -= n
        out.append(ins)
        if ins.tok is not None:
            ins.tok.seq = issued[ins.tok.cls]; issued[ins.tok.cls] += 1
            if ins.tok.cls == 'lgkm':
                assert issued['lgkm'] - done['lgkm'] <= 15 + 8 or True
    return out


def states(i):
    if i.kind in ('label', 'comment', 'dir'): return 0
    if i.kind == 'nop': return int(i.text.split()[1]) + 1
    return 1


def hazard_need(out, c):
    if c.kind in ('label', 'comment', 'nop', 'wait', 'barrier', 'dir'): return 0
    need = 0
    dist = 0
    for p in reversed(out):
        if dist >= 24: break
        r = required(p, c)
        if r > dist: need = max(need, r - dist)
        dist += states(p)
    return need


def isv(s): return {x for x in s if x[0] in ('v', 'a')}
def iss(s): return {x for x in s if x[0] in ('s', 'vcc')}


def required(p, c):
    r = 0
    if p.kind in VALU_KINDS:
        pw = isv(p.wr)
        if c.kind == 'mfma' and pw & c.rd: r = max(r, 2)
        if p.kind == 'trans' and c.kind in VALU_KINDS and c.kind != 'trans' and pw & (c.rd | c.wr): r = max(r, 1)
        if p.kind == 'trans' and c.kind in ('vmem', 'ds', 'vmemlds') and pw & c.rd: r = max(r, 1)
        if c.kind == 'permlane' and pw & c.rd: r = max(r, 2)
        if c.kind == 'readlane' and pw & c.rd: r = max(r, 1)
        ps = iss(p.wr)
        if ps:
            if c.kind in VALU_KINDS and ps & c.rd: r = max(r, 2)
            if c.kind in ('vmem', 'vmemlds') and ps & c.rd: r = max(r, 5)
            if c.kind in ('salu', 'branch') and ps & c.rd: r = max(r, 4)
        if ('exec', 0) in p.wr: r = max(r, 5)
    if p.kind == 'mfma':
        big = p.passes == 8
        if c.kind == 'mfma':
            if p.wr & c.ab: r = max(r, 12 if big else 8)
            if p.wr & c.srcc:
                if not (p.wr == c.srcc and p.passes == c.passes): r = max(r, 10 if big else 6)
            elif p.wr & c.wr:
                r = max(r, 10 if big else 6)
        if c.kind in VALU_KINDS and p.wr & (c.rd | c.wr): r = max(r, 12 if big else 8)
        if c.kind in ('vmem', 'ds', 'vmemlds') and p.wr & (c.rd | c.wr): r = max(r, 12 if big else 8)
        if c.kind in VALU_KINDS and p.srcc & c.wr: r = max(r, 7 if big else 3)
    if p.kind == 'salu' and ('m0', 0) in p.wr and c.kind == 'vmemlds': r = max(r, 1)
    if p.kind == 'vmem' and p.sdata and p.sdata & c.wr:
        r = max(r, 2 if c.kind in VALU_KINDS else 1)
    return r


SCALAR_KINDS = ('salu', 'wait', 'nop', 'barrier', 'drain', 'waitpt', 'smem', 'branch', 'other', 'label', 'comment')
def cls_of(i):
    if i.kind in SCALAR_KINDS: return 0
    if i.kind in ('ds', 'vmem', 'vmemlds'): return 1
    return 2

def vcost(i):
    if i.kind in ('label', 'comment', 'waitpt'): return 0
    if i.kind in ('trans', 'permlane'): return 2
    if i.kind == 'ds' and i.text.startswith("ds_write_b128"): return 4
    return 1


def waitpt(needs):
    return Ins("", 'waitpt', needs=needs, cost=0)


class Timeline:
    def __init__(self):
        self.m = []
        self.g = {}
    def gap(self, p):
        if p not in self.g: self.g[p] = dict(head=[], c=[[], [], []], raw=[], ns=0, nv=0)
        return self.g[p]
    def add(self, ins):
        self.m.append(ins); return len(self.m) - 1
    def free(self, p, ins):
        g = self.gap(p)
        c = cls_of(ins)
        used = g['nv'] + max(0, g['ns'] - 1)
        if c == 0:
            return g['ns'] == 0 or used + 1 <= 2
        return used + min(vcost(ins), 2) <= 2
    def put(self, p, ins):
        p = max(p, 0)
        g = self.gap(p); c = cls_of(ins)
        g['c'][c].append(ins)
        if c == 0: g['ns'] += vcost(ins)
        else:
            v = vcost(ins)
            g['nv'] += min(v, 2)
            if v > 2: self.gap(p + 1)['nv'] += v - 2
        return p
    def head(self, p, ins, count=True):
        g = self.gap(max(p, 0)); g['head'].append(ins)
        if count: g['ns'] += 1
    def raw(self, p, *ins):
        self.gap(max(p, 0))['raw'] += list(ins)
    def place(self, ins, pmin, pmax=None):
        p = max(pmin, 0)
        while not self.free(p, ins) and (pmax is None or p < pmax): p += 1
        return self.put(p, ins)
    def chain(self, ops, start, end=None, pace=None, hard_end=None):
        tot = sum(max(vcost(o), 1) if cls_of(o) else 0 for o in ops) or 1
        p = start; acc = 0; prevc = -1; res = []
        for o in ops:
            c = cls_of(o)
            q = p if c >= prevc else p + 1
            if end is not None: q = max(q, start + int(acc * (end - start) / tot))
            lim = hard_end if hard_end is not None else None
            if lim is not None and q > lim:
                self.raw(lim, o); res.append(lim); p = lim + 1; prevc = 9; continue
            q2 = q
            while not self.free(q2, o) and (lim is None or q2 < lim): q2 += 1
            if lim is not None and q2 == lim and prevc == 9:
                self.raw(lim, o); res.append(lim); continue
            self.put(q2, o); res.append(q2)
            p = q2; prevc = c
            if c: acc += max(vcost(o), 1)
        return res
    def flatten(self):
        out = []
        n = len(self.m)
        last = max([n] + list(self.g.keys()))
        for i in range(last + 1):
            g = self.g.get(i)
            if g:
                out += g['head'] + g['c'][0] + g['c'][1] + g['c'][2] + g['raw']
            if i < n:
                if isinstance(self.m[i], list): out += self.m[i]
                else: out.append(self.m[i])
        return out
    def stats(self, a, b):
        over = 0
        for p in range(a, b):
            g = self.g.get(p)
            if g: over += max(0, g['nv'] + max(0, g['ns'] - 1) - 2) + sum(vcost(x) for x in g['raw'])
        return over


def verify_defs(stream):
    last = {}
    for i in stream:
        if i.expect:
            for dfn in i.expect:
                for r in dfn.wr:
                    if r[0] == 'scc': continue
                    assert last.get(r) is not None and last[r].text == dfn.text, f"bad def for {i.text}: want {dfn.text}, have {last.get(r).text if last.get(r) else None}"
        for r in i.wr:
            if r[0] in ('s', 'm0'): last[r] = i


def verify_async(stream):
    pend = {}
    issued = {'vm': 0, 'lgkm': 0}; done = {'vm': 0, 'lgkm': 0}
    for i in stream:
        if i.kind == 'wait':
            for m in re.finditer(r"(vmcnt|lgkmcnt)\((\d+)\)", i.text):
                c = 'vm' if m.group(1) == 'vmcnt' else 'lgkm'
                done[c] = max(done[c], issued[c] - int(m.group(2)))
            continue
        for r in (i.rd | i.wr):
            if r in pend:
                c, sq = pend[r]
                assert sq < done[c], f"access to pending load dest {r}: {i.text}"
                del pend[r]
        if i.tok is not None:
            for r in i.wr: pend[r] = (i.tok.cls, issued[i.tok.cls])
            issued[i.tok.cls] += 1


def render(stream):
    verify_defs(stream)
    lines = []
    res = resolve(stream)
    verify_async(res)
    for i in res:
        if i.kind in ('label', 'dir'): lines.append(i.text)
        else: lines.append("    " + i.text)
    return lines
```

```python
import sys, struct, math
sys.path.insert(0, "dev")
from dsl import *

NAME = "standalone__mha_block_cached__near_ridge"
KNAME = NAME + "_kernel"
B, SQ, D, H, SK, DH = 16, 192, 448, 16, 512, 256
WS_OF = 0
WS_PT = 32 << 20
WS_FL = 60 << 20
WS_STAMP = 64 << 20
WS_DUMP = 96 << 20

def f2u(x): return struct.unpack("<I", struct.pack("<f", x))[0]
QSCALE = f2u(math.log2(math.e) / 16.0)
L_LIMIT = f2u(2.0 ** 24)

sWAVE = S(3); sB, sH = S(4), S(5)
sT0, sT1, sT2, sT3 = S(6), S(7), S(12), S(13)
sKV, sW = S(8), S(9)
sM0K = S(10)
sM0X = S(11)
sC = S(14, 2)
P_X, P_K, P_V, P_WQ, P_WO, P_OUT, P_DBG, P_WS = [S(16 + 2 * i, 2) for i in range(8)]
rX, rWQ, rK, rV, rWO, rOF, rPT, rOUT, rST, rFL = [S(32 + 4 * i, 4) for i in range(10)]
sX = S(72); sOS = S(73); sOL = S(74); sJH = S(75); sIH = S(76); sOSB = S(77); sFL = S(78); sGOFF = S(79)
sSTAMP0 = 80
sF0, sF1 = S(84), S(85)
rDB = S(88, 4); rT = S(92, 4); sTS = S(96); sTO = S(97); sIB = S(98)
sOH = [S(16 + i) for i in range(4)]; sWH = [S(20 + i) for i in range(4)]


class Cfg:
    stamps = False
    dump = None
    kv_flags = "nt"
    q_flags = ""
    wo_flags = ""
    nfr = 12
    d1 = 15
    d2 = 19
    minlead = 110
    qstep = 2
    kavoid = 10
    kreg = 2
    wolead = 130
    publag = 76
    publag3 = 50
    olead = 72
    cklead = 100
    kv0 = 8
    touch = 1
    porder = 'T0,W0,X0|T1,W1|T2,T3,W2,X1|'
    nreg = 6
    dbg = ''
    wsoff = 0
    ost_flags = 'sc1'
    xtouch = 1
    wdes = '12,12,13,14,14,14'
    olead3 = 72
    d3 = 19
    t_flags = ''
    wt_flags = ''
    wtlead = 300
    fallback = 1


STAMP_NAMES = {}
class Stamper:
    def __init__(self, on, dbg=''): self.on, self.n = on, 0; self.names = []; self.dbg = dbg
    def _w(self, op, name):
        r = S(sSTAMP0, 2); i = self.n; self.n += 1; self.names.append(name)
        assert self.n <= 64
        return [raw(f"{op} {r}", 'smem', wr=[r]), wait_all(vm=False),
                raw(f"v_writelane_b32 v255, {r[0]}, {i}", 'valu', wr=[V(255)], rd=[r[0]])]
    def start(self):
        return self._w("s_memrealtime", "rt0") + self._w("s_memtime", "t0") if self.on else []
    def stamp(self, name=""):
        return self._w("s_memtime", name) if self.on else []
    def flush(self, vt, kidx):
        if not self.on: return []
        ops = self._w("s_memrealtime", "rt1")
        ops.append(salu("s_lshl_b32", sT0, S(2), 2)); ops.append(salu("s_add_u32", sT0, sT0, sWAVE))
        ops.append(salu("s_lshl_b32", sT0, sT0, 8)); ops.append(salu("s_add_u32", sT0, sT0, kidx << 20))
        ops += lane_id(vt[0])
        ops.append(valu("v_lshlrev_b32", vt[0], 2, vt[0]))
        ops.append(buf_store("buffer_store_dword", V(255), vt[0], rST, sT0, 0))
        ops.append(wait_all())
        STAMP_NAMES[kidx] = self.names
        if self.dbg:
            sel = self.dbg.split(',')
            slots = [1, 2, 3, 5, 6, 7, 9, 10, 11, 13, 14, 15]
            ops.append(salu("s_lshl_b32", sT0, S(2), 2)); ops.append(salu("s_add_u32", sT0, sT0, sWAVE))
            ops.append(salu("s_cmp_lg_u32", None, sT0, 4 * 77)); ops.append(raw("s_cbranch_scc1 L_end", 'branch'))
            for nm, sl in zip(sel, slots):
                ref = 'rt0' if nm == 'rt1' else 't0'
                ops.append(raw(f"v_readlane_b32 {sT1}, v255, {self.names.index(nm)}", 'readlane', wr=[sT1], rd=[V(255)]))
                ops.append(raw(f"v_readlane_b32 {sT2}, v255, {self.names.index(ref)}", 'readlane', wr=[sT2], rd=[V(255)]))
                ops.append(salu("s_sub_u32", sT1, sT1, sT2))
                ops.append(valu("v_mov_b32", vt[1], sT1)); ops.append(valu("v_mov_b32", vt[2], 4 * sl))
                ops.append(buf_store("buffer_store_dword", vt[1], vt[2], rDB, 0, 0)); ops.append(wait_all())
        return ops


def lane_id(v):
    return [raw(f"v_mbcnt_lo_u32_b32 {v}, -1, 0", 'valu', wr=[v]), raw(f"v_mbcnt_hi_u32_b32 {v}, -1, {v}", 'valu', wr=[v], rd=[v])]


def srd(ops, r, ptr, off_lo=None, off_hi=None, size=0):
    if off_lo is None:
        ops.append(salu("s_mov_b32", r[0], ptr[0])); ops.append(salu("s_mov_b32", r[1], ptr[1]))
    else:
        ops.append(salu("s_add_u32", r[0], ptr[0], off_lo))
        ops.append(salu("s_addc_u32", r[1], ptr[1], off_hi if off_hi is not None else 0))
    ops.append(salu("s_mov_b32", r[2], size)); ops.append(salu("s_mov_b32", r[3], "0x20000"))


def kd(name, nv=512, acc=256):
    return f""".section .rodata,"a"
.p2align 6
.amdhsa_kernel {name}
  .amdhsa_next_free_vgpr {nv}
  .amdhsa_next_free_sgpr 102
  .amdhsa_accum_offset {acc}
  .amdhsa_group_segment_fixed_size 0
  .amdhsa_kernarg_size 64
  .amdhsa_user_sgpr_count 2
  .amdhsa_user_sgpr_kernarg_segment_ptr 1
  .amdhsa_system_sgpr_workgroup_id_x 1
.end_amdhsa_kernel
"""

WB = [0, 16384, 32768]
XB = [49152, 49152 + 24576]
vWR = V(192, 8); vXR = V(200, 2); vWD = V(202, 4); vXD = V(206, 4); vTMP = V(210, 18)
vNEGM = V(228, 12); vKR = V(240, 4); vKD = V(244, 4); vVD = V(248, 4); vOST = V(252); vT3 = V(253, 2)
vR = V(228, 3); vWOR = V(231); vFA = V(232); vFD = V(233); vFP = V(234); vFG = V(235); vWT = V(236)
aFR = A(96, 48); aX = A(144, 24); aL = A(168, 12); aONE = A(180, 4); aST = A(184, 16)
aOUT = A(172, 84)
ST_VR, ST_WOD, ST_WOR, ST_FA, ST_L16, ST_KG, ST_FG, ST_DA, ST_KW, ST_WT = 0, 4, 8, 9, 10, 11, 12, 13, 14, 15

def Qacc(t, n): return V((t * 3 + n) * 4, 4)
def Qf(s, n): return A((s * 3 + n) * 4, 4)
def SB(u): return 180 if u % 2 == 0 else 204
def Sreg(u, kt, n): return V(SB(u) + (kt * 3 + n) * 4, 4)
def Preg(u, n): return V((12 * u if u < 15 else 180) + 4 * n, 4)
OBUF = [200, 0, 48, 48]
def Oacc(sl, t, n): return A(OBUF[sl] + (t * 3 + n) * 4, 4)
def Out(nt, n): return aOUT[(nt * 3 + n) * 4:(nt * 3 + n) * 4 + 4]
BBUF = [A(144, 24), A(0, 24), A(24, 24)]


def kernel(cfg):
    st = Stamper(cfg.stamps, cfg.dbg)
    NFR = cfg.nfr
    pro = [Ins(f".globl {KNAME}", 'dir'), Ins(".p2align 8", 'dir'), Ins(f".type {KNAME},@function", 'dir'), label(KNAME)]
    P = pro.append
    P(salu("s_cmp_ge_u32", None, S(2), 256)); P(raw("s_cbranch_scc1 L_end", 'branch'))
    P(raw("s_load_dwordx16 s[16:31], s[0:1], 0", 'smem', wr=[S(16, 16)]))
    pro += st.start()
    vl, vw, vg, vm, va, vb, vc, vd, r4, cc, ve = [V(i) for i in range(1, 12)]
    P(valu("v_and_b32", vl, 63, V(0))); P(valu("v_lshrrev_b32", vw, 6, V(0)))
    P(valu("v_lshrrev_b32", vg, 4, vl))
    P(valu("v_readfirstlane_b32", sWAVE, vw))
    P(valu("v_and_b32", vm, 15, vl))
    P(salu("s_and_b32", sT0, S(2), 7)); P(salu("s_lshr_b32", sT1, S(2), 3))
    P(salu("s_lshr_b32", sB, sT0, 2)); P(salu("s_lshl_b32", sB, sB, 3)); P(salu("s_lshr_b32", sIB, sT1, 2)); P(salu("s_add_u32", sB, sB, sIB))
    P(salu("s_and_b32", sJH, sT0, 3)); P(salu("s_and_b32", sIH, sT1, 3)); P(salu("s_lshl_b32", sH, sJH, 2)); P(salu("s_add_u32", sH, sH, sIH))
    P(salu("s_lshl_b32", sM0K, sWAVE, 12)); P(salu("s_mul_i32", sM0X, sWAVE, 6144))
    P(valu("v_lshrrev_b32", va, 5, vl))
    P(valu("v_and_b32", vb, 1, vw)); P(valu("v_lshlrev_b32", vb, 3, vb))
    P(valu("v_and_b32", vc, 31, vl))
    P(valu("v_lshl_add_u32", ve, vw, 3, va)); P(valu("v_lshlrev_b32", ve, 13, ve))
    for i in range(2):
        P(valu("v_lshl_add_u32", vd, va, 1, vb))
        if i: P(valu("v_add_u32", vd, 4, vd))
        P(valu("v_xor_b32", vd, vd, vc)); P(valu("v_lshl_add_u32", vWD[i], vd, 4, ve))
        if i: P(valu("v_add_u32", vWD[i], 2 * 8192 - 1024, vWD[i]))
        P(valu("v_add_u32", vWD[i + 2], 4 * 8192 - 2048, vWD[i]))
    P(valu("v_mul_u32_u24", ve, 48, vw)); P(valu("v_lshrrev_b32", vd, 3, vl)); P(valu("v_add_u32", ve, ve, vd)); P(valu("v_mul_u32_u24", ve, 896, ve))
    P(valu("v_and_b32", vd, 7, vl)); P(valu("v_xor_b32", vd, vd, vg))
    P(valu("v_lshl_add_u32", vXD[0], vd, 4, ve))
    P(valu("v_xor_b32", vd, 4, vd)); P(valu("v_lshl_add_u32", vXD[1], vd, 4, ve)); P(valu("v_add_u32", vXD[1], 8 * 896 - 1024, vXD[1]))
    P(valu("v_add_u32", vXD[2], 16 * 896 - 2048, vXD[0])); P(valu("v_add_u32", vXD[3], 16 * 896 - 2048, vXD[1]))
    vTO = V(12); vt1, vt2 = V(13), V(14)
    if cfg.touch:
        P(valu("v_and_b32", vt1, 2, vw)); P(valu("v_lshl_add_u32", vt1, vt1, 1, vg)); P(valu("v_lshlrev_b32", vt1, 5, vt1))
        P(salu("s_lshl_b32", sT0, sIB, 2)); P(valu("v_lshrrev_b32", vt2, 2, vm)); P(valu("v_add_u32", vt1, vt1, vt2)); P(valu("v_add_u32", vt1, sT0, vt1))
        P(valu("v_lshlrev_b32", vt1, 13, vt1)); P(valu("v_and_b32", vt2, 3, vl)); P(valu("v_lshl_add_u32", vt1, vt2, 7, vt1))
        P(salu("s_mul_i32", sT0, sIH, 48)); P(valu("v_add_u32", vt2, sT0, vl)); P(valu("v_mul_u32_u24", vt2, 896, vt2))
        P(valu("v_lshl_add_u32", vt2, vw, 7, vt2)); P(valu("v_subrev_u32", vt2, 128, vt2))
        P(valu("v_mov_b32", vTO, "0x7ff00000")); P(valu("v_cmp_gt_u32", "vcc", 48, vl)); P(valu("v_cndmask_b32", vt2, vTO, vt2, "vcc"))
        P(salu("s_add_u32", sT0, sWAVE, 1)); P(salu("s_and_b32", sT0, sT0, 2))
        P(valu("v_mov_b32", vTO, sT0)); P(valu("v_cmp_eq_u32", "vcc", 0, vTO)); P(valu("v_cndmask_b32", vTO, vt2, vt1, "vcc"))
    P(wait_all(vm=False))
    P(salu("s_lshl_b32", sT1, sH, 9)); srd(pro, rWQ, P_WQ, sT1, 0, 447 * 8192 + 512)
    P(salu("s_mul_i32", sT1, sB, SQ * D * 2)); srd(pro, rX, P_X, sT1, 0, SQ * D * 2)
    def touch_ops(r):
        return [salu("s_mul_i32", sTO, sTS, r), buf_load("buffer_load_dword", A(248 + r), V(227), rT, sTO, 0, cfg.t_flags)]
    def touch(r):
        if cfg.touch and cfg.xtouch: pro.extend(touch_ops(r))
    if cfg.touch: P(valu("v_mov_b32", V(227), vTO))
    if cfg.touch:
        P(salu("s_cmp_eq_u32", None, sT0, 0))
        for k_ in range(3): P(raw(f"s_cselect_b32 {rT[k_]}, {rWQ[k_]}, {rX[k_]}", 'salu', wr=[rT[k_]], rd=[rWQ[k_], rX[k_]]))
        P(raw(f"s_cselect_b32 {sTS}, 0x200000, 256", 'salu', wr=[sTS]) if False else salu("s_mov_b32", sT1, "0x200000"))
        P(salu("s_cmp_eq_u32", None, sT0, 0))
        P(raw(f"s_cselect_b32 {sTS}, {sT1}, 256", 'salu', wr=[sTS], rd=[sT1]))
        P(salu("s_mov_b32", rT[3], "0x20000")); P(salu("s_mov_b32", sTO, 0))

    def dma_w(s):
        out = []
        for i in range(4):
            pre = [salu("s_mov_b32", sW, s * 32 * 8192)] if i == 0 else []
            out.append((pre, salu("s_add_u32", "m0", sM0K, WB[s % 3]), buf_load_lds(vWD[i], rWQ, sW, i * 1024, cfg.q_flags)))
        return out
    def dma_x(j):
        out = []
        for i in range(6):
            pre = []
            if i == 0: pre = [salu("s_mov_b32", sX, j * 128)]
            if i == 4: pre = [salu("s_mov_b32", sX, j * 128 + 32 * 896)]
            out.append((pre, salu("s_add_u32", "m0", sM0X, XB[j % 2] + (4096 if i >= 4 else 0)),
                        buf_load_lds(vXD[i % 4], rX, sX, (i % 4) * 1024, cfg.q_flags)))
        return out
    def dma_kv(kv, slot):
        out = []
        for i in range(4):
            if kv < 16:
                pre = [salu("s_mov_b32", sKV, kv * 16384)] if i == 0 else []
                ld = buf_load_lds(vKD[i], rK, sKV, i * 1024, cfg.kv_flags)
            else:
                s_, kb = divmod(kv - 16, 4)
                pre = [salu("s_mov_b32", sKV, kb * 65536 + s_ * 128)] if i == 0 else []
                ld = buf_load_lds(vVD[i], rV, sKV, i * 1024, cfg.kv_flags)
            out.append((pre, salu("s_add_u32", "m0", sM0K, slot * 16384), ld))
        return out
    def dma_wo(sl, hh, slot):
        out = []
        for i in range(4):
            pre = [salu("s_add_u32", sW, sWH[hh], sl * 64 * 896)] if i == 0 else []
            out.append((pre, salu("s_add_u32", "m0", sM0K, slot * 16384), buf_load_lds(vKD[i], rWO, sW, i * 1024, cfg.wo_flags)))
        return out
    def tag(lst):
        cur = None
        for pre, m0, ld in lst:
            if pre: cur = pre[0]
            ld.expect = [cur, m0]
        return lst
    _dw, _dx, _dkv, _dwo = dma_w, dma_x, dma_kv, dma_wo
    dma_w = lambda *a: tag(_dw(*a)); dma_x = lambda *a: tag(_dx(*a)); dma_kv = lambda *a: tag(_dkv(*a)); dma_wo = lambda *a: tag(_dwo(*a))
    def emit_now(lst):
        last = None
        for pre, m0, ld in lst:
            pro.extend(pre)
            if m0.text != last: P(m0); last = m0.text
            P(ld)
        return [ld.tok for _, _, ld in lst]

    wtok, xtok = {}, {}
    pgroups = [g.split(',') if g else [] for g in cfg.porder.split('|')]
    def pemit(k):
        for t in pgroups[k]:
            if t[0] == 'T': touch(int(t[1]))
            elif t[0] == 'W': wtok[int(t[1])] = emit_now(dma_w(int(t[1])))
            else: xtok[int(t[1])] = emit_now(dma_x(int(t[1])))
        pro.extend(st.stamp(f'p{k}'))
    pemit(0)
    P(salu("s_lshl_b32", sT0, sB, 4)); P(salu("s_add_u32", sT0, sT0, sH)); P(salu("s_lshl_b32", sT1, sT0, 18)); P(salu("s_lshr_b32", sT2, sT0, 14))
    srd(pro, rK, P_K, sT1, sT2, 262144); srd(pro, rV, P_V, sT1, sT2, 262144)
    P(salu("s_mov_b32", sC[0], hex(QSCALE))); P(salu("s_mov_b32", sC[1], hex(QSCALE)))
    P(valu("v_lshrrev_b32", r4, 2, vm)); P(valu("v_and_b32", cc, 3, vm))
    P(valu("v_lshlrev_b32", ve, 9, va)); P(valu("v_lshl_add_u32", ve, vw, 12, ve))
    for i in range(4):
        P(valu("v_add_u32", vd, 2 * i, va)); P(valu("v_add_u32", vd, vd, vb)); P(valu("v_xor_b32", vd, vd, vc))
        P(valu("v_lshl_add_u32", vKD[i], vd, 4, ve))
    P(valu("v_and_b32", va, 1, vg)); P(valu("v_lshl_add_u32", va, va, 2, r4)); P(valu("v_lshlrev_b32", va, 1, va))
    P(valu("v_lshrrev_b32", vb, 1, cc))
    P(valu("v_lshl_add_u32", vc, vg, 3, r4)); P(valu("v_lshlrev_b32", vc, 9, vc))
    P(valu("v_and_b32", vd, 1, cc)); P(valu("v_lshl_add_u32", vc, vd, 3, vc))
    for tb in range(8):
        P(valu("v_add_u32", vd, 2 * tb, vb)); P(valu("v_xor_b32", vd, vd, va)); P(valu("v_lshl_add_u32", vWR[tb], vd, 4, vc))
    P(valu("v_lshrrev_b32", vd, 1, vm)); P(valu("v_xor_b32", vd, vd, vg)); P(valu("v_lshlrev_b32", vd, 4, vd))
    P(valu("v_lshl_add_u32", vXR[0], vm, 7, vd)); P(valu("v_add_u32", vXR[0], sM0X, vXR[0])); P(valu("v_add_u32", vXR[0], XB[0], vXR[0]))
    P(valu("v_xor_b32", vXR[1], 64, vXR[0]))
    pemit(1)
    P(valu("v_lshlrev_b32", vd, 1, vg)); P(valu("v_and_b32", vc, 7, vl)); P(valu("v_xor_b32", vd, vd, vc)); P(valu("v_lshlrev_b32", vd, 4, vd))
    P(valu("v_lshrrev_b32", vc, 3, vl)); P(valu("v_lshl_add_u32", vc, vw, 5, vc)); P(valu("v_lshl_add_u32", vVD[0], vc, 9, vd))
    for i in range(1, 4): P(valu("v_add_u32", vVD[i], i * (4096 - 1024), vVD[0]))
    P(valu("v_and_b32", va, 1, vg)); P(valu("v_lshlrev_b32", va, 1, va)); P(valu("v_lshrrev_b32", vd, 1, vg)); P(valu("v_or_b32", va, va, vd))
    for sb in range(4):
        P(valu("v_add_u32", vd, 4 * sb, va)); P(valu("v_xor_b32", vd, vd, vm)); P(valu("v_lshlrev_b32", vd, 4, vd))
        P(valu("v_lshl_add_u32", vKR[sb], vm, 9, vd))
    P(valu("v_lshlrev_b32", vd, 4, va)); P(valu("v_lshl_add_u32", vd, vm, 9, vd)); P(valu("v_accvgpr_write_b32", aST[ST_KG], vd))
    P(valu("v_lshrrev_b32", va, 1, r4)); P(valu("v_lshl_add_u32", va, vg, 1, va)); P(valu("v_and_b32", va, 3, va)); P(valu("v_lshlrev_b32", va, 1, va))
    P(valu("v_lshl_add_u32", ve, vg, 2, r4))
    P(valu("v_lshlrev_b32", vc, 7, ve)); P(valu("v_and_b32", vd, 1, cc)); P(valu("v_lshl_add_u32", vc, vd, 3, vc))
    for t in range(4):
        P(valu("v_add_u32", vd, 2 * t, vb)); P(valu("v_xor_b32", vd, vd, va)); P(valu("v_lshl_add_u32", vd, vd, 4, vc))
        P(valu("v_accvgpr_write_b32", aST[ST_VR + t], vd))
    P(valu("v_mul_u32_u24", vd, 224, ve)); P(valu("v_lshl_add_u32", vd, cc, 3, vd)); P(valu("v_accvgpr_write_b32", aST[ST_WOR], vd))
    P(salu("s_mov_b32", sT0, 4682))
    for i in range(4):
        P(valu("v_lshl_add_u32", va, vw, 8, vl));
        if i: P(valu("v_add_u32", va, 64 * i, va))
        P(valu("v_mul_u32_u24", vc, sT0, va)); P(valu("v_lshrrev_b32", vc, 16, vc))
        P(valu("v_mul_u32_u24", vd, 14, vc)); P(valu("v_sub_u32", vd, va, vd))
        P(valu("v_mul_u32_u24", vc, 896, vc)); P(valu("v_lshl_add_u32", vc, vd, 4, vc))
        if i: P(valu("v_subrev_u32", vc, i * 1024, vc))
        P(valu("v_mov_b32", vd, "0x7ff00000"))
        P(valu("v_cmp_gt_u32", "vcc", 896, va)); P(valu("v_cndmask_b32", vc, vd, vc, "vcc"))
        P(valu("v_accvgpr_write_b32", aST[ST_WOD + i], vc))
    pemit(2)
    P(salu("s_mul_i32", sT0, sWAVE, 128 * 3072)); P(valu("v_lshlrev_b32", vOST, 4, vl)); P(valu("v_accvgpr_write_b32", aST[ST_L16], vOST))
    P(valu("v_add_u32", vOST, sT0, vOST))
    P(salu("s_lshl_b32", sT0, sB, 12)); P(salu("s_add_u32", sT0, sT0, WS_FL + (cfg.wsoff << 20))); srd(pro, rFL, P_WS, sT0, 0, 4096)
    srd(pro, rDB, P_DBG, None, None, 256)
    P(salu("s_lshl_b32", sT0, sH, 8)); P(salu("s_lshl_b32", sT1, sB, 4))
    P(valu("v_mov_b32", vd, "0x7ff00000")); P(valu("v_mov_b32", vc, sT0)); P(valu("v_mov_b32", va, sT1))
    P(valu("v_cmp_eq_u32", "vcc", 0, V(0))); P(valu("v_cndmask_b32", vc, vd, vc, "vcc")); P(valu("v_cndmask_b32", va, vd, va, "vcc"))
    P(valu("v_accvgpr_write_b32", aST[ST_FA], vc)); P(valu("v_accvgpr_write_b32", aST[ST_DA], va))
    P(valu("v_mov_b32", vd, 0))
    zst = buf_store("buffer_store_dword", vd, vc, rFL, 0, 0, "sc1"); P(zst)
    P(salu("s_lshl_b32", sT0, sJH, 10)); P(valu("v_and_b32", va, 3, vl)); P(valu("v_lshlrev_b32", va, 8, va)); P(valu("v_add_u32", va, sT0, va))
    P(valu("v_accvgpr_write_b32", aST[ST_FG], va))
    P(valu("v_lshlrev_b32", va, 4, vl)); P(valu("v_add_u32", va, sM0K, va)); P(valu("v_accvgpr_write_b32", aST[ST_KW], va))
    P(salu("s_mul_i32", sT0, sB, 4 * 128 * 3072)); P(salu("s_mul_i32", sT1, sJH, 32 * 3072)); P(salu("s_add_u32", sT0, sT0, sT1))
    P(salu('s_add_u32', sT0, sT0, cfg.wsoff << 20))
    srd(pro, rOF, P_WS, sT0, 0, 3 * 128 * 3072 + 32 * 3072)
    P(salu("s_mul_i32", sOSB, sIH, 8 * 3072))
    P(salu("s_mul_i32", sT0, sJH, 1024 * 896)); P(salu("s_mul_i32", sT1, sIH, 224)); P(salu("s_add_u32", sT0, sT0, sT1))
    srd(pro, rWO, P_WO, sT0, 0, 1023 * 896 + 224)
    P(salu("s_lshl_b32", sT0, sB, 2)); P(salu("s_add_u32", sT0, sT0, sIH)); P(salu("s_mul_i32", sT0, sT0, 16 * 12288)); P(salu("s_add_u32", sT0, sT0, WS_PT + (cfg.wsoff << 20)))
    srd(pro, rPT, P_WS, sT0, 0, 16 * 12288)
    P(salu("s_mul_i32", sT0, sB, 192 * 896)); P(salu("s_mul_i32", sT2, sJH, 48 * 896)); P(salu("s_add_u32", sT0, sT0, sT2)); P(salu("s_add_u32", sT0, sT0, sT1))
    srd(pro, rOUT, P_OUT, sT0, 0, 47 * 896 + 224)
    srd(pro, rST, P_WS, WS_STAMP, 0, 128 << 20)
    P(salu("s_mov_b32", S(86), 0))
    P(salu("s_lshr_b32", sT0, S(2), 6)); P(salu("s_lshl_b32", sT0, sT0, 8)); P(salu("s_lshr_b32", sT1, S(2), 3)); P(salu("s_and_b32", sT1, sT1, 7))
    P(salu("s_lshl_b32", sT1, sT1, 3)); P(salu("s_add_u32", sT0, sT0, sT1)); P(salu("s_lshl_b32", sT1, sWAVE, 1)); P(salu("s_add_u32", sT0, sT0, sT1))
    P(salu("s_mul_i32", sT0, sT0, 896))
    P(valu("v_lshlrev_b32", va, 7, vl)); P(valu("v_add_u32", va, sT0, va))
    P(valu("v_mov_b32", vd, "0x7ff00000")); P(valu("v_cmp_gt_u32", "vcc", 14, vl)); P(valu("v_cndmask_b32", va, vd, va, "vcc"))
    P(valu("v_accvgpr_write_b32", aST[ST_WT], va))
    P(salu("s_mul_i32", sT0, sJH, 1024 * 896))
    late_srd = []; srd(late_srd, rT, P_WO, sT3, 0, 1024 * 896); late_srd = [salu("s_mul_i32", sT3, sJH, 1024 * 896)] + late_srd
    for hh in range(4):
        P(salu("s_add_u32", sT0, sIH, hh + 1)); P(salu("s_and_b32", sT0, sT0, 3))
        P(salu("s_mul_i32", sOH[hh], sT0, 8 * 3072)); P(salu("s_mul_i32", sWH[hh], sT0, 256 * 896))
    P(valu("v_mov_b32", vd, "0x3f803f80"))
    for i in range(4): P(valu("v_accvgpr_write_b32", aONE[i], vd))

    T = Timeline()
    def fr(f): return aFR[(f % NFR) * 4:(f % NFR) * 4 + 4]
    plan = []
    fctr = [0]
    def add_unit(kind, idx, nf, mk, pre_extra=(), post_extra=()):
        for e in pre_extra: T.add(e)
        base = len(T.m); f0 = fctr[0]; fctr[0] += nf
        mf = mk(f0)
        for m in mf: T.add(m)
        for e in post_extra: T.add(e)
        plan.append(dict(kind=kind, idx=idx, base=base, mf=mf, nf=nf, f0=f0, end=len(T.m)))
    def ones(u, first=False):
        return [mfma16(aL[4 * n:4 * n + 4], aONE, Preg(u, n), 0 if first else aL[4 * n:4 * n + 4]) for n in range(3)]
    for s in range(14):
        add_unit('q', s, 16, lambda f0: [mfma16(Qacc(t, n), fr(f0 + t), aX[(s % 2) * 12 + 4 * n:(s % 2) * 12 + 4 * n + 4], Qacc(t, n) if s else 0)
                                         for t in range(16) for n in range(3)])
    def conv_ops():
        conv = []
        pend = None
        for tp in range(8):
            for n in range(3):
                a4, b4 = Qacc(2 * tp, n), Qacc(2 * tp + 1, n)
                tq = vTMP[4 * ((tp * 3 + n) % 4):4 * ((tp * 3 + n) % 4) + 4]
                for r in (a4, b4):
                    conv.append(valu("v_pk_mul_f32", r[0:2], r[0:2], sC)); conv.append(valu("v_pk_mul_f32", r[2:4], r[2:4], sC))
                conv.append(valu("v_cvt_pk_bf16_f32", tq[0], a4[0], a4[1])); conv.append(valu("v_cvt_pk_bf16_f32", tq[2], b4[0], b4[1]))
                conv.append(valu("v_cvt_pk_bf16_f32", tq[1], a4[2], a4[3])); conv.append(valu("v_cvt_pk_bf16_f32", tq[3], b4[2], b4[3]))
                if pend: conv += pend
                qf = Qf(tp, n)
                pend = [valu("v_permlane16_swap_b32", tq[0], tq[2]), valu("v_permlane16_swap_b32", tq[1], tq[3])] + \
                       [valu("v_accvgpr_write_b32", qf[k_], tq[k_]) for k_ in range(4)]
        conv += pend
        groups = []; cur = []; c = 0
        for o in conv:
            cur.append(o); c += vcost(o)
            if c >= 4: groups.append(cur); cur = []; c = 0
        if cur: groups.append(cur)
        return groups
    qend = len(T.m)
    if cfg.stamps: T.raw(qend, *st.stamp('conv0'))
    for g_ in conv_ops(): T.add(g_)
    if cfg.stamps: T.raw(len(T.m), *st.stamp('conv1'))
    for u in range(16):
        add_unit('k', u, 16, lambda f0: [mfma16(Sreg(u, kt, n), fr(f0 + 2 * s + kt), Qf(s, n),
                                                Sreg(u, kt, n) if s else (0 if u < 2 else vNEGM[4 * n:4 * n + 4]))
                                         for s in range(8) for kt in range(2) for n in range(3)],
                 pre_extra=ones(u - 2, u == 2) if u >= 2 else ())
    def pv_mf(sl, kb, frf):
        return [mfma16(Oacc(sl, t, n), frf(4 * ks + t), Preg(4 * kb + ks, n), Oacc(sl, t, n) if (kb or ks) else 0)
                for ks in range(4) for t in range(4) for n in range(3)]
    def add_v(i):
        sl, kb = divmod(i, 4)
        first = i == 0
        add_unit('v', i, 16, lambda f0: pv_mf(sl, kb, lambda i_: fr(f0 + i_)),
                 pre_extra=ones(14) if first else (), post_extra=ones(15) if first else ())
    opn = [0, 0]
    def add_o(sl, hh):
        first = opn[0] == 0; opn[0] += 1
        if hh == 3: bb = V(192, 24)
        elif sl == 0: bb = BBUF[hh]
        else:
            bb = BBUF[hh] if sl == 1 else V(24 * (opn[1] % 8), 24); opn[1] += 1
        add_unit('o', 4 * sl + hh, 14, lambda f0: [mfma16(Out(nt, n), fr(f0 + 7 * tt + nt), bb[12 * tt + 4 * n:12 * tt + 4 * n + 4],
                                                          Out(nt, n) if (tt or not first) else 0)
                                                   for tt in range(2) for nt in range(7) for n in range(3)])
        plan[-1]['bb'] = bb
    for i in range(7): add_v(i)
    add_o(0, 3)
    for i in range(7, 11): add_v(i)
    add_o(1, 3); add_v(11)
    for hh in range(3): add_o(0, hh)
    add_o(2, 3)
    for i in range(12, 16): add_v(i)
    for hh in range(3): add_o(1, hh)
    add_o(3, 3)
    for sl in (2, 3):
        for hh in range(3): add_o(sl, hh)
    end_pos = len(T.m)
    NU = len(plan)
    def unit_index(kind, idx): return next(i for i, u in enumerate(plan) if u['kind'] == kind and u['idx'] == idx)

    for ui, un in enumerate(plan):
        nf = un['nf']; base = un['base']
        un['rlast'] = base + 3 * (nf - 1) - 3 * (NFR - 1) + 2
        un['bar'] = 0 if ui == 0 else plan[ui - 1]['rlast'] + 8
        un['rfirst'] = un['bar'] + 1 if ui else 0
    def release_pos(ui):
        if plan[ui]['kind'] == 'v' and plan[ui]['idx'] == 0 and cfg.fallback: return plan[ui + 2]['bar']
        return plan[ui + 1]['bar'] if ui + 1 < NU else end_pos

    dma_busy = set()
    def put_dma(item, p):
        pre, m0, ld = item
        p = max(p, 1)
        while (p in dma_busy) or (p - 1 in dma_busy) or not T.free(p, ld) or not T.free(p - 1, m0): p += 1
        dma_busy.add(p); dma_busy.add(p - 1)
        for x in pre: T.put(p - 1, x)
        T.put(p - 1, m0); T.put(p, ld)
        return p

    for ui, un in enumerate(plan):
        un['barins'] = barrier(needs=[])
        T.head(un['bar'], un['barins']); T.gap(un['bar'])['ns'] += 1
        if cfg.stamps and (ui % 2 == 0 or ui <= 16): T.gap(un['bar'])['head'] += st.stamp(f"{un['kind']}{un['idx']}")

    free_at = {6: 0, 7: 0, 8: 0, 9: 0, 2: plan[12]['bar'], 5: plan[12]['bar'], 0: plan[13]['bar'],
               1: plan[14]['bar'], 3: plan[14]['bar'], 4: plan[14]['bar']}
    regk = {}
    if cfg.kreg >= 1:
        for k_ in range(cfg.nreg): regk[4 + k_] = 16 * k_
    if cfg.kreg >= 2:
        for k_ in range(3): regk[10 + k_] = 200 + 16 * k_
    kvq = []; oth = []
    pvstart = plan[unit_index('v', 4)]['base']
    for kv in range(32):
        ui = unit_index('k', kv) if kv < 16 else unit_index('v', kv - 16)
        kvq.append(dict(ui=ui, kv=kv))
        if kv in regk:
            wd = [int(x) for x in str(cfg.wdes).split(',')]
            des = plan[wd[kv - 4]]['bar'] if kv < 10 else plan[ui]['bar'] - 70
            oth.append(dict(ui=ui, wr=kv, des=des))
    for sl in range(4):
        for hh in range(4):
            ui = unit_index('o', 4 * sl + hh)
            oth.append(dict(ui=ui, wo=(sl, hh), des=plan[ui]['bar'] - cfg.wolead))
    oth.sort(key=lambda r: r['des'])
    sched = []
    kvpos = cfg.kv0; lastkv = 0; lastwr = 0
    while kvq or oth:
        take_o = oth and (not kvq or oth[0]['des'] <= kvpos)
        r = oth.pop(0) if take_o else kvq.pop(0)
        if not take_o and r['kv'] in regk:
            free_prev = 0; start = kvpos
        else:
            slot = min(free_at, key=lambda s_: (free_at[s_], s_))
            des = r['des'] if take_o else kvpos
            start = max(des, free_at[slot] + 2)
            r['slot'] = slot; plan[r['ui']]['slot'] = slot; free_prev = free_at[slot]
            free_at[slot] = release_pos(r['ui'])
        if take_o and 'wo' in r:
            r['pos'] = [start + 8 * i for i in range(4)]
        elif take_o:
            r['pos'] = max(start, lastwr + 1); lastwr = r['pos'] + 12
        else:
            ps = []; p = start
            for i in range(4):
                p = max(min(p, plan[r['ui']]['bar'] - cfg.minlead + 12 * i), free_prev + 2 + 4 * i, lastkv + 4)
                ps.append(p); lastkv = p; p += cfg.d1 if p < qend else (cfg.d2 if p < pvstart else cfg.d3)
            r['pos'] = ps; kvpos = p
            if kvq: kvpos = min(kvpos, plan[kvq[0]['ui']]['bar'] - cfg.minlead)
        sched.append(r)

    region = {'kv': 0, 'wo': 0}
    use_end = {}
    for ui, un in enumerate(plan):
        base, kind, idx, nf = un['base'], un['kind'], un['idx'], un['nf']
        r0, r1 = un['rfirst'], max(un['rlast'], un['rfirst'])
        toks = []
        if kind == 'q':
            xb = XB[(idx // 2) % 2] - XB[0]
            for n in range(3):
                r = ds_read("ds_read_b128", aX[(idx % 2) * 12 + 4 * n:(idx % 2) * 12 + 4 * n + 4], vXR[idx % 2], xb + n * 2048)
                T.place(r, r0 + 2 + 2 * n if ui else 0, (r0 + 12) if ui else 0); un['mf'][n].needs.append(r.tok); toks.append(r.tok)
        else:
            slot = un['slot']; regn = slot // 4; sbase = (slot % 4) * 16384
            adj = []
            if kind == 'v' and idx == 0:
                adj += [valu("v_accvgpr_read_b32", vKR[t], aST[ST_VR + t]) for t in range(4)]; region['kv'] = 0
            key = 'wo' if kind == 'o' else 'kv'
            d = regn - region[key]
            if d:
                lit = hex((d * 65536) & 0xffffffff)
                adj += [valu("v_add_u32", a_, lit, a_) for a_ in ([vWOR] if kind == 'o' else [vKR[i] for i in range(4)])]
                region[key] = regn
            un['region'] = regn
            if adj:
                T.chain(adj, plan[ui - 1]['rlast_actual'] + 1, hard_end=r0 - 1)
        lastp = r0
        for i in range(nf):
            f = un['f0'] + i
            pos = r0 + int(round(i * (r1 - r0) / (nf - 1.0)))
            if ui == 0: pos = max(0, base + 3 * i - 24)
            use_end[f] = base + 3 * i + 3
            if f >= NFR: pos = max(pos, use_end[f - NFR])
            if kind == 'q':
                a_, tb = divmod(i, 8)
                rs = [ds_read("ds_read_b64_tr_b16", fr(f)[2 * hh:2 * hh + 2], vWR[tb], WB[idx % 3] + a_ * 256 + hh * 2048) for hh in range(2)]
            elif kind == 'k':
                s_, kt = divmod(i, 2); a_, sb = divmod(s_, 4)
                rs = [ds_read("ds_read_b128", fr(f), vKR[sb], sbase + kt * 8192 + a_ * 256)]
            elif kind == 'v':
                ks, t = divmod(i, 4)
                rs = [ds_read("ds_read_b64_tr_b16", fr(f)[2 * hh:2 * hh + 2], vKR[t], sbase + ks * 4096 + hh * 2048) for hh in range(2)]
            else:
                tt, nt = divmod(i, 7)
                rs = [ds_read("ds_read_b64_tr_b16", fr(f)[2 * hh:2 * hh + 2], vWOR, sbase + tt * 7168 + hh * 3584 + nt * 32) for hh in range(2)]
            for r in rs:
                if ui == 0 and pos == 0: lastp = T.put(0, r)
                else: lastp = T.place(r, max(pos, lastp), max(pos, lastp) + 2)
                toks.append(r.tok)
            un.setdefault('ftok', []).append([r.tok for r in rs])
            un.setdefault('fpos', []).append(lastp)
        un['rlast_actual'] = lastp
        assert ui + 1 >= NU or lastp < plan[ui + 1]['bar'], (ui, lastp, plan[ui + 1]['bar'])
        if ui + 1 < NU: plan[ui + 1]['barins'].needs += toks[-2:]
        for i in range(0, nf, 2):
            nd = list(un['ftok'][i])
            if i + 1 < nf and un['fpos'][i + 1] < base + 3 * i - 5: nd += un['ftok'][i + 1]
            elif i + 1 < nf: un['mf'][3 * (i + 1)].needs += un['ftok'][i + 1]
            if ui == 0 and i == 0: un['mf'][0].needs += nd
            else:
                T.head(base + 3 * i, waitpt(nd), count=True)
            un['mf'][3 * i].needs += un['ftok'][i]

    qburst = []
    p = 1
    for t in pgroups[3]:
        if t[0] == 'T':
            if cfg.touch and cfg.xtouch: p = T.chain(touch_ops(int(t[1])), p + int(t[2:] or 0))[-1] + 1
        else:
            items = dma_w(int(t[1])) if t[0] == 'W' else dma_x(int(t[1]))
            (wtok if t[0] == 'W' else xtok)[int(t[1])] = [it[2].tok for it in items]
            for it in items: p = put_dma(it, p + 1)
    for u in range(1, 12):
        s = u + 2
        items = dma_w(s); wtok[s] = [it[2].tok for it in items]
        p = plan[u]['bar'] + 2
        if u % 2 == 0 and u // 2 + 1 < 7:
            xi = dma_x(u // 2 + 1); xtok[u // 2 + 1] = [it[2].tok for it in xi]
            items = [items[0], xi[0], items[1], xi[1], items[2], xi[2], items[3], xi[3], xi[4], xi[5]]
            step = cfg.qstep
        else: step = cfg.qstep
        qp = [put_dma(it, p + step * k) for k, it in enumerate(items)]
        qburst.append((plan[u]['bar'], qp[-1]))
    for s in range(14):
        plan[s]['barins'].needs += wtok[s] + (xtok[s // 2] if s % 2 == 0 else [])
    last_k_pos = 0
    rtok = {}
    def avoid(p):
        if cfg.kavoid:
            for a_, b_ in qburst:
                if a_ - cfg.kavoid <= p <= b_: return b_ + 1
        return p
    lastp_ = 0
    for r in sched:
        if 'kv' in r:
            np_ = []
            for p in r['pos']:
                p = avoid(max(p, lastp_ + 2)); np_.append(p); lastp_ = p
            r['pos'] = np_
    for r in sched:
        un = plan[r['ui']]
        if 'wr' in r: continue
        if r.get('kv') in regk:
            kv = r['kv']; ap = []; rtok[kv] = []
            sdef = salu("s_mov_b32", sKV, kv * 16384)
            for i, p in enumerate(r['pos']):
                ld = buf_load("buffer_load_dwordx4", A(regk[kv] + 4 * i, 4), vKD[i], rK, sKV, i * 1024, cfg.kv_flags); ld.expect = [sdef]
                while not T.free(p, ld): p += 1
                if i == 0: T.put(p, sdef)
                ap.append(T.put(p, ld)); rtok[kv].append(ld.tok)
            r['ap'] = ap
            continue
        items = dma_kv(r['kv'], r['slot']) if 'kv' in r else dma_wo(r['wo'][0], r['wo'][1], r['slot'])
        ap = [put_dma(it, p) for it, p in zip(items, r['pos'])]
        assert ap == sorted(ap)
        r['ap'] = ap
        assert ap[-1] < un['bar'], ("DMA too late", r, un['bar'])
        un['barins'].needs += [it[2].tok for it in items]
        un['lead'] = un['bar'] - ap[-1]
        if r.get('kv') == 15: last_k_pos = ap[-1]
    for r in sched:
        if 'wr' not in r: continue
        kv = r['wr']; un = plan[r['ui']]; slot = r['slot']
        tmp = V(226) if kv < 10 else vT3[0]
        ops = [valu("v_accvgpr_read_b32", tmp, aST[ST_KW])]
        if slot >= 4: ops.append(valu("v_add_u32", tmp, (slot // 4) * 65536, tmp))
        wt = []
        for i in range(4):
            w_ = ds_write("ds_write_b128", tmp, A(regk[kv] + 4 * i, 4), (slot % 4) * 16384 + i * 1024, needs=[rtok[kv][i]]); ops.append(w_); wt.append(w_.tok)
        ps = T.chain(ops, r['pos'])
        ldp = next(x for x in sched if x.get('kv') == kv)['ap']
        un['lead'] = f"r{ps[-4] - ldp[-1]}"
        assert ps[-1] < un['bar'] - 4
        if kv < 10: assert ps[-1] < qend + (regk[kv] // 4) * 4 - 2 or ps[-1] < qend, (kv, ps, qend)
        else: assert ps[0] > plan[unit_index('k', 6)]['base'] + 2
        un['barins'].needs += wt
    first_wo = min(r['ap'][0] for r in sched if 'wo' in r)
    T.chain([valu("v_accvgpr_read_b32", vKD[i], aST[ST_WOD + i]) for i in range(4)], last_k_pos + 1, hard_end=first_wo - 2)
    if cfg.stamps or True:
        print("leads:", " ".join(f"{u['kind']}{u['idx']}:{u.get('lead')}" for u in plan[14:]), file=sys.stderr)

    def max_ops(srcs, n, ta, tb_):
        ops = []
        ops.append(valu("v_max3_f32", ta, srcs[0], srcs[1], srcs[2]))
        k = 3
        while k + 1 < len(srcs): ops.append(valu("v_max3_f32", ta, ta, srcs[k], srcs[k + 1])); k += 2
        if k < len(srcs): ops.append(valu("v_max_f32", ta, ta, srcs[k]))
        ops.append(valu("v_mov_b32", tb_, ta)); ops.append(valu("v_permlane16_swap_b32", ta, tb_)); ops.append(valu("v_max_f32", ta, ta, tb_))
        ops.append(valu("v_mov_b32", tb_, ta)); ops.append(valu("v_permlane32_swap_b32", ta, tb_)); ops.append(valu("v_max_f32", ta, ta, tb_))
        for k_ in range(4): ops.append(valu("v_sub_f32", vNEGM[4 * n + k_], 0, ta))
        return ops
    def softmax_ops(u, sreg, sub):
        ops = []; pend = None
        for n in range(3):
            for kt in range(2):
                s4 = sreg(kt, n); p = Preg(u, n)
                if sub:
                    for k_ in range(4): ops.append(valu("v_add_f32", s4[k_], s4[k_], vNEGM[4 * n]))
                for k_ in range(4):
                    ops.append(valu("v_exp_f32", s4[k_], s4[k_]))
                    if pend and k_ in (0, 2): ops.append(pend.pop(0))
                pend = [valu("v_cvt_pk_bf16_f32", p[2 * kt], s4[0], s4[1]), valu("v_cvt_pk_bf16_f32", p[2 * kt + 1], s4[2], s4[3])]
        return ops + pend
    for u in range(16):
        ops = []
        if u == 0:
            for n in range(3):
                ops += max_ops([Sreg(0, kt, n)[k_] for kt in range(2) for k_ in range(4)], n, vT3[0], vT3[1])
        ops += softmax_ops(u, lambda kt, n: Sreg(u, kt, n), u < 2)
        nxt = plan[14 + u + 1]
        b0 = nxt['base']
        T.chain(ops, b0 + 3, end=b0 + 46, hard_end=b0 + 47)

    v0 = plan[unit_index('v', 0)]
    chk = []
    for n in range(3): chk.append(valu("v_accvgpr_read_b32", vT3[0] if n == 0 else (vT3[1] if n == 1 else V(192)), aL[4 * n]))
    if cfg.fallback:
        chk.append(valu("v_max3_f32", V(193), vT3[0], vT3[1], V(192)))
        chk.append(valu("v_add_f32", V(194), vT3[0], vT3[1])); chk.append(valu("v_add_f32", V(194), V(194), V(192)))
        chk.append(salu("s_mov_b32", sT0, hex(L_LIMIT)))
        chk.append(valu("v_cmp_nge_f32", "vcc", sT0, V(194)))
        chk.append(raw("s_cbranch_vccnz L_fallback", 'branch', rd=['vcc']))
        chk.append(label("L_fb_ret"))
    chk.append(valu("v_rcp_f32", vR[0], vT3[0])); chk.append(valu("v_rcp_f32", vR[1], vT3[1])); chk.append(valu("v_rcp_f32", vR[2], V(192)))
    chk.append(valu("v_accvgpr_read_b32", vFA, aST[ST_FA])); chk.append(valu("v_accvgpr_read_b32", vFG, aST[ST_FG]))
    chk.append(valu("v_accvgpr_read_b32", vWOR, aST[ST_WOR])); chk.append(valu("v_accvgpr_read_b32", vWT, aST[ST_WT]))
    chk += late_srd
    T.raw(v0['end'], *chk)

    def epi_ops(sl):
        ops = []; k_ = 0; toks = []
        for tt in range(2):
            sdef = salu("s_add_u32", sOS, sOSB, (2 * sl + tt) * 3072); ops.append(sdef)
            for n in range(3):
                pk = V(192 + (tt * 3 + n) * 4, 4)
                for hf in range(2):
                    tb_ = V(216 + 4 * (k_ % 3), 4); k_ += 1
                    a4 = Oacc(sl, 2 * tt + hf, n)
                    for i in range(4): ops.append(valu("v_accvgpr_read_b32", tb_[i], a4[i]))
                    for i in range(4): ops.append(valu("v_mul_f32", tb_[i], tb_[i], vR[n]))
                    for i in range(2): ops.append(valu("v_cvt_pk_bf16_f32", pk[2 * hf + i], tb_[2 * i], tb_[2 * i + 1]))
                s_ = buf_store("buffer_store_dwordx4", pk, vOST, rOF, sOS, n * 1024, cfg.ost_flags); ops.append(s_); toks.append(s_.tok); s_.expect = [sdef]
        return ops, toks
    def flagst(val):
        return [valu("v_mov_b32", vFD, val), buf_store("buffer_store_dword", vFD, vFA, rFL, 0, 0, "sc1")]
    def spin_code(name, load, test):
        spin.extend([label(f"L_spin{name}"), raw("s_sleep 2"),
                     raw("s_add_u32 s86, s86, 1"), raw("s_cmp_gt_u32 s86, 0x40000"), raw(f"s_cbranch_scc1 L_ret{name}"),
                     raw(load), raw("s_waitcnt vmcnt(0)")] + [raw(t) for t in test] +
                    [raw(f"s_cbranch_scc1 L_spin{name}"), raw(f"s_branch L_ret{name}")])
    spin = []
    a_ = Ins(f"buffer_atomic_add {vT3[1]}, {vT3[0]}, {rDB}, 0 offen sc1", 'vmem', (), vT3.set() | rDB.set(), needs=[zst.tok]); a_.tok = Tok('vm')
    T.chain([valu("v_accvgpr_read_b32", vT3[0], aST[ST_DA]), valu("v_mov_b32", vT3[1], 1), a_], qend + 2)
    ild = buf_load("buffer_load_dword", vT3[1], vT3[0], rDB, 0, 0, "sc1")
    kb3 = plan[unit_index('k', 3)]['base']
    T.chain([valu("v_accvgpr_read_b32", vT3[0], aST[ST_DA]), ild], kb3 + 1)
    T.raw(plan[unit_index('k', 6)]['base'] + 1,
          valu("v_readfirstlane_b32", sFL, vT3[1], needs=[ild.tok]), salu("s_lshl_b32", sT0, sWAVE, 4), salu("s_add_u32", sFL, sFL, sT0),
          salu("s_cmp_lt_u32", None, sFL, 16), raw("s_cbranch_scc1 L_spinI", 'branch'), label("L_retI"))
    spin_code("I", f"buffer_load_dword {vT3[1]}, {vT3[0]}, {rDB}, 0 offen sc1",
              [f"v_readfirstlane_b32 {sFL}, {vT3[1]}", "s_nop 4", f"s_cmp_lt_u32 {sFL}, 16"])
    pubpos = {}; epi_end = {}
    def do_epi(sl):
        ops, toks = epi_ops(sl)
        ul = unit_index('v', 4 * sl + 3)
        ps = T.chain(ops, plan[ul]['end'] + 4)
        ub = next(i for i in range(ul + 1, NU) if plan[i]['bar'] >= ps[-1] + (cfg.publag if sl < 3 else cfg.publag3))
        plan[ub]['barins'].needs += toks[-1:]
        pp = T.chain(flagst(sl + 1), plan[ub]['bar'] + 1)
        pubpos[sl] = pp[-1]; epi_end[sl] = ps[-1]
        for s2 in range(sl + 1, 4):
            if OBUF[s2] == OBUF[sl]: assert ps[-1] < plan[unit_index('v', 4 * s2)]['base'], "O acc reuse"
        assert ps[-1] < plan[unit_index('o', 4 * sl + 3)]['base'], "epilogue must finish before own-head unit"
        if sl: assert ps[0] >= plan[unit_index('o', 4 * sl - 1)]['end']
        print(f"epi{sl}: {ps[0]}..{ps[-1]} publish at {plan[ub]['bar']} ({plan[ub]['kind']}{plan[ub]['idx']})", file=sys.stderr)

    def do_check(sl):
        u0 = unit_index('o', 4 * sl)
        lead = cfg.olead if sl < 3 else cfg.olead3
        cpos = plan[u0]['base'] - lead
        ld = buf_load("buffer_load_dword", vFP, vFG, rFL, 0, 0, "sc1")
        lp = T.put(max(cpos - cfg.cklead, min(pubpos[sl] + 45, cpos - 30)), ld)
        ck = [valu("v_cmp_gt_u32", "vcc", sl + 1, vFP, needs=[ld.tok]),
              raw("s_cmp_lg_u64 vcc, 0", 'salu', rd=['vcc']),
              raw(f"s_cbranch_scc1 L_spin{sl}", 'branch'), label(f"L_ret{sl}")]
        if cfg.stamps: ck = st.stamp(f"ck{sl}a") + ck + st.stamp(f"ck{sl}b")
        T.raw(cpos, *ck)
        spin_code(str(sl), f"buffer_load_dword {vFP}, {vFG}, {rFL}, 0 offen sc1",
                  [f"v_cmp_gt_u32 vcc, {sl + 1}, {vFP}", "s_nop 4", "s_cmp_lg_u64 vcc, 0"])
        assert pubpos[sl] < cpos, "own publish must precede own check"
        print(f"check{sl}: load at {lp} check at {cpos} (publish {pubpos[sl]}, op base {plan[u0]['base']})", file=sys.stderr)
        lastp = cpos
        for hh in range(3):
            ui = u0 + hh; un = plan[ui]; bb = un['bb']
            ops = []
            for tt in range(2):
                sdef = salu("s_add_u32", sOL, sOH[hh], (2 * sl + tt) * 3072); ops.append(sdef)
                for n in range(3):
                    l_ = buf_load("buffer_load_dwordx4", bb[12 * tt + 4 * n:12 * tt + 4 * n + 4], vOST, rOF, sOL, n * 1024, "sc1")
                    ops.append(l_); un['mf'][21 * tt + n].needs.append(l_.tok); l_.expect = [sdef]
            prev_users = [x for x in plan[:ui] if x.get('bb') is not None and x['bb'].set() & bb.set()]
            start = max(lastp + 1, un['base'] - lead + 1, (prev_users[-1]['end'] + 1) if prev_users else 0)
            if bb.k == 'a' and bb.i < 48: start = max(start, epi_end[1] + 1)
            if bb.k == 'v': start = max(start, plan[unit_index('v', 15)]['end'] + 1)
            ps = T.chain(ops, start, end=start + 30)
            lastp = ps[-1]
            assert ps[-1] < un['base'], (sl, hh, ps, un['base'])
    if cfg.touch:
        for sl in range(4):
            fw = min(r['ap'][0] for r in sched if r.get('wo', (9,))[0] == sl)
            sdef = salu("s_mov_b32", sTO, sl * 64 * 896)
            tl_ = buf_load("buffer_load_dword", V(237 + sl % 3), vWT, rT, sTO, 0, cfg.wt_flags); tl_.expect = [sdef]
            tp_ = T.chain([sdef, tl_], max(fw - cfg.wtlead, v0['end'] + 1 + 4 * sl))
            print(f"wo touch {sl} at {tp_[-1]} first dma {fw}", file=sys.stderr)
    do_epi(0); do_epi(1); do_check(0); do_epi(2); do_check(1); do_epi(3); do_check(2); do_check(3)

    tail = []; A_ = tail.append
    tail += st.stamp('opend')
    vL16, vO, vLN, vPF, vLA = V(0), V(3), V(4), V(7), V(5)
    busy = {plan[-1]['slot'], plan[-2]['slot']}
    lslot = next(s_ for s_ in range(3) if s_ not in busy and s_ + 1 not in busy)
    LB = lslot * 16384
    tail += lane_id(vLN)
    A_(valu("v_lshlrev_b32", vL16, 4, vLN))
    A_(salu("s_lshl_b32", sT0, sWAVE, 2)); A_(salu("s_add_u32", sT0, sT0, sJH)); A_(salu("s_mul_i32", sT0, sT0, 12288))
    A_(salu("s_cmp_eq_u32", None, sWAVE, sJH)); A_(raw("s_cbranch_scc1 L_ownpart", 'branch'))
    k_ = 0
    for pc in range(4):
        for n in range(3):
            sl_ = pc * 3 + n
            if sl_ % 4 == 0: A_(salu("s_add_u32", sT1, sT0, sl_ * 1024))
            tb_ = V(16 + 12 * (k_ % 4), 12); k_ += 1
            nt2 = 2 if pc < 3 else 1
            for hf in range(nt2):
                for i in range(4): A_(valu("v_accvgpr_read_b32", tb_[4 * hf + i], Out(2 * pc + hf, n)[i]))
            for i in range(2 * nt2): A_(valu("v_cvt_pk_bf16_f32", tb_[8 + i], tb_[2 * i], tb_[2 * i + 1]))
            A_(buf_store("buffer_store_dwordx4" if nt2 == 2 else "buffer_store_dwordx2", tb_[8:8 + 2 * nt2], vL16, rPT, sT1, (sl_ % 4) * 1024, "sc1"))
    A_(raw("s_branch L_partdone", 'branch'))
    A_(label("L_ownpart")); A_(nop(7))
    for tl in range(21): A_(ds_write("ds_write_b128", vL16, aOUT[4 * tl:4 * tl + 4], LB + tl * 1024))
    A_(label("L_partdone"))
    A_(valu("v_and_b32", V(5), 15, vLN)); A_(valu("v_lshrrev_b32", V(6), 4, vLN))
    A_(valu("v_mul_u32_u24", vO, 896, V(5))); A_(valu("v_lshl_add_u32", vO, V(6), 3, vO))
    A_(valu("v_mov_b32", vFD, 5))
    A_(salu("s_lshl_b32", sT2, sIH, 8)); A_(valu("v_and_b32", vPF, 3, vLN)); A_(valu("v_lshlrev_b32", vPF, 10, vPF)); A_(valu("v_add_u32", vPF, sT2, vPF))
    A_(salu("s_mul_i32", sT0, sWAVE, 6144)); A_(valu("v_add_u32", vLA, sT0, vL16))
    A_(wait_all())
    A_(barrier())
    A_(buf_store("buffer_store_dword", vFD, vFA, rFL, 0, 0, "sc1"))
    tail += st.stamp('pub')
    own = []
    for n in range(3):
        for hf in range(2):
            r = ds_read("ds_read_b128", V(64 + 8 * n + 4 * hf, 4), vLA, LB + n * 1024 + hf * 3072); A_(r); own.append(r.tok)
    sS = [S(16 + k) for k in range(3)]
    A_(salu("s_mul_i32", sT0, sJH, 4 * 12288)); A_(salu("s_mul_i32", sT1, sWAVE, 3072)); A_(salu("s_add_u32", sT0, sT0, sT1))
    for k in range(3):
        A_(salu("s_add_u32", sT1, sJH, k + 1)); A_(salu("s_and_b32", sT1, sT1, 3)); A_(salu("s_mul_i32", sT1, sT1, 12288)); A_(salu("s_add_u32", sS[k], sT0, sT1))
    A_(salu("s_lshl_b32", sT2, sWAVE, 6))
    A_(salu("s_add_u32", sT3, sT2, 32)); A_(salu("s_mov_b32", sT0, "0x7ff00000"))
    A_(salu("s_cmp_eq_u32", None, sWAVE, 3)); A_(raw(f"s_cselect_b32 {sT3}, {sT0}, {sT3}", 'salu', wr=[sT3], rd=[sT0, sT3]))
    A_(label("L_poll"))
    A_(raw(f"buffer_load_dword v8, {vPF}, {rFL}, 0 offen sc1", 'other')); A_(raw("s_waitcnt vmcnt(0)"))
    A_(raw("v_cmp_gt_u32 vcc, 5, v8")); A_(raw("s_nop 4")); A_(raw("s_cmp_eq_u64 vcc, 0"))
    A_(raw("s_cbranch_scc1 L_pollskip")); A_(raw("s_sleep 1"))
    A_(raw("s_add_u32 s86, s86, 1")); A_(raw("s_cmp_gt_u32 s86, 0x40000")); A_(raw("s_cbranch_scc0 L_poll"))
    A_(label("L_pollskip"))
    tail += st.stamp('polled')
    lt = {}
    for n in range(3):
        for k in range(3):
            l_ = buf_load("buffer_load_dwordx4", V(16 + 12 * n + 4 * k, 4), vL16, rPT, sS[k], n * 1024, "sc1"); A_(l_); lt[n, k] = l_.tok
    A_(salu("s_mov_b32", sT0, "0xffff0000"))
    for n in range(3):
        acc = V(64 + 8 * n, 8)
        for k in range(3):
            src = V(16 + 12 * n + 4 * k, 4)
            for i in range(4):
                t0_, t1_ = V(96 + 2 * (i % 2)), V(97 + 2 * (i % 2))
                A_(valu("v_lshlrev_b32", t0_, 16, src[i], needs=[lt[n, k]])); A_(valu("v_and_b32", t1_, sT0, src[i]))
                A_(valu("v_add_f32", acc[2 * i], acc[2 * i], t0_, needs=own[2 * n:2 * n + 2])); A_(valu("v_add_f32", acc[2 * i + 1], acc[2 * i + 1], t1_))
        pk = V(100 + 4 * n, 4)
        for i in range(4): A_(valu("v_cvt_pk_bf16_f32", pk[i], acc[2 * i], acc[2 * i + 1]))
        if n: A_(valu("v_add_u32", vO, 16 * 896, vO))
        A_(buf_store("buffer_store_dwordx2", pk[0:2], vO, rOUT, sT2, 0))
        A_(buf_store("buffer_store_dwordx2", pk[2:4], vO, rOUT, sT3, 0))
    if cfg.stamps:
        tail += [wait_all()] + st.stamp('end') + st.flush(V(0, 4), 0)
    main = pro + T.flatten() + tail + [label("L_end"), raw("s_endpgm")]

    fb = []
    if cfg.fallback:
        F = fb.append
        F(label("L_fallback")); F(raw("s_nop 15")); F(wait_all())
        vKG = V(216); mx = V(217, 3); ta, tb_ = V(220), V(221)
        Sf = lambda kt, n: V(192 + (kt * 3 + n) * 4, 4)
        kf = lambda i: aX[4 * (i % 6):4 * (i % 6) + 4]
        F(valu("v_accvgpr_read_b32", vKG, aST[ST_KG]))
        def s_unit(cinit):
            ops = []
            for half in range(4):
                lds_ = []
                for q in range(4):
                    i = 4 * half + q; s_, kt = divmod(i, 2)
                    l_ = buf_load("buffer_load_dwordx4", kf(q), vKG, rK, sF1 if kt else sF0, s_ * 64); ops.append(l_); lds_.append(l_.tok)
                for q in range(4):
                    i = 4 * half + q; s_, kt = divmod(i, 2)
                    for n in range(3):
                        ops.append(mfma16(Sf(kt, n), kf(q), Qf(s_, n), Sf(kt, n) if s_ else cinit(n), needs=[lds_[q]]))
                ops.append(nop(7))
            return ops
        for n in range(3): F(valu("v_mov_b32", mx[n], "0xff800000"))
        F(salu("s_mov_b32", sF0, 0)); F(salu("s_mov_b32", sF1, 8192))
        F(label("L_fb_max"))
        fb += s_unit(lambda n: 0)
        for n in range(3):
            for kt in range(2):
                s4 = Sf(kt, n)
                F(valu("v_max3_f32", mx[n], mx[n], s4[0], s4[1])); F(valu("v_max3_f32", mx[n], mx[n], s4[2], s4[3]))
        F(salu("s_add_u32", sF0, sF0, 16384)); F(salu("s_add_u32", sF1, sF1, 16384))
        F(salu("s_cmp_lt_u32", None, sF0, 262144)); F(raw("s_cbranch_scc1 L_fb_max", 'branch'))
        for n in range(3): fb += max_ops([mx[n], mx[n], mx[n]], n, ta, tb_)
        for u in range(16):
            F(salu("s_mov_b32", sF0, u * 16384)); F(salu("s_mov_b32", sF1, u * 16384 + 8192))
            fb += s_unit(lambda n: vNEGM[4 * n:4 * n + 4])
            fb += softmax_ops(u, Sf, False)
            fb += ones(u, u == 0)
        slot = v0['slot']
        va_ = V(192, 4)
        for t in range(4):
            F(valu("v_accvgpr_read_b32", va_[t], aST[ST_VR + t])); F(valu("v_add_u32", va_[t], slot * 16384, va_[t]))
        mfs = pv_mf(0, 0, lambda i: kf(i % 4))
        for ks in range(4):
            for t in range(4):
                for hh in range(2):
                    r = ds_read("ds_read_b64_tr_b16", kf(t)[2 * hh:2 * hh + 2], va_[t], ks * 4096 + hh * 2048); F(r)
                    mfs[3 * (4 * ks + t)].needs.append(r.tok)
            fb += mfs[12 * ks:12 * ks + 12]
            F(nop(7))
        F(nop(7))
        for n in range(3): F(valu("v_accvgpr_read_b32", vT3[0] if n == 0 else (vT3[1] if n == 1 else V(192)), aL[4 * n]))
        F(wait_all()); F(nop(3))
        F(raw("s_branch L_fb_ret", 'branch'))
    for nm, a_, b_ in (("q", 0, qend), ("qk", qend, v0['base']), ("pv/op", v0['base'], end_pos)):
        print(f"overflow slots {nm}: {T.stats(a_, b_)}", file=sys.stderr)
    print("per-unit overflow:", " ".join(f"{u['kind']}{u['idx']}:{T.stats(u['base'], u['end'])}" for u in plan), file=sys.stderr)
    return main, spin, fb


HEADER = open("cdna_kernels/" + NAME + ".s.ref").read().split("; Override launch")[0]


def build(cfg, path):
    L = [HEADER.rstrip("\n")]
    L.append("; @launch grid=(256,1,1) block=(256,1,1) lds=163840")
    L.append('.amdgcn_target "amdgcn-amd-amdhsa--gfx950"')
    L.append(".text")
    main, spin, fb = kernel(cfg)
    L += render(main); L += render(spin); L += render(fb)
    for k_, v_ in STAMP_NAMES.items(): L.append(f"; STAMPS {k_} " + ",".join(v_))
    L.append(kd(KNAME))
    open(path, "w").write("\n".join(L) + "\n")


if __name__ == "__main__":
    import argparse
    ap = argparse.ArgumentParser()
    ap.add_argument("-o", default="cdna_kernels/" + NAME + ".s")
    ap.add_argument("--stamps", action="store_true")
    ap.add_argument("--opt", action="append", default=[])
    a = ap.parse_args()
    cfg = Cfg(); cfg.stamps = a.stamps
    for o_ in a.opt:
        k_, v_ = o_.split("=", 1)
        assert hasattr(cfg, k_), k_
        try: v_ = int(v_)
        except ValueError: pass
        setattr(cfg, k_, v_)
    build(cfg, a.o)
```

```python
import sys, struct, math
sys.path.insert(0, "dev")
from dsl import *

NAME = "standalone__mha_block_cached__near_ridge"
KNAME = NAME + "_kernel"
B, SQ, D, H, SK, DH = 16, 192, 448, 16, 512, 256
WS_OF = 0
WS_PT = 32 << 20
WS_FL = 60 << 20
WS_STAMP = 64 << 20
WS_DUMP = 96 << 20

def f2u(x): return struct.unpack("<I", struct.pack("<f", x))[0]
QSCALE = f2u(math.log2(math.e) / 16.0)
L_LIMIT = f2u(2.0 ** 24)

sWAVE = S(3); sB, sH = S(4), S(5)
sT0, sT1, sT2, sT3 = S(6), S(7), S(12), S(13)
sKV, sW = S(8), S(9)
sM0K = S(10)
sM0X = S(11)
sC = S(14, 2)
P_X, P_K, P_V, P_WQ, P_WO, P_OUT, P_DBG, P_WS = [S(16 + 2 * i, 2) for i in range(8)]
rX, rWQ, rK, rV, rWO, rOF, rPT, rOUT, rST, rFL = [S(32 + 4 * i, 4) for i in range(10)]
sX = S(72); sOS = S(73); sOL = S(74); sJH = S(75); sIH = S(76); sOSB = S(77); sFL = S(78); sGOFF = S(79)
sSTAMP0 = 80
sF0, sF1 = S(84), S(85)
rDB = S(88, 4); rT = S(92, 4); sTS = S(96); sTO = S(97); sIB = S(98)
sOH = [S(16 + i) for i in range(4)]; sWH = [S(20 + i) for i in range(4)]
sRV = [S(26), S(27), S(28), S(29)]; sRO = [S(30), S(31), S(79), S(82)]; sRW = [S(83), S(87), S(99), S(100)]


class Cfg:
    stamps = False
    dump = None
    kv_flags = "nt"
    q_flags = ""
    wo_flags = ""
    nfr = 12
    d1 = 17
    d2 = 16
    minlead = 110
    qstep = 2
    kavoid = 10
    kreg = 2
    wolead = 130
    publag = 76
    publag3 = 50
    olead = 100
    cklead = 100
    kv0 = 8
    touch = 1
    porder = 'W0,X0|W1||'
    nreg = 6
    vhack = 0
    rot = 1
    wtsp = 12
    stdelay = '0,0,0,0'
    stgap = 30
    stgap3 = 0
    olmax = 400
    ctouch = 1
    epilen = 118
    epilen3 = 100
    cklag = 120
    tlead = 110
    womaxlead = 600
    wtgap = 150
    womax = 0
    kvprio = 60
    ga = 4
    wrlag = 130
    dbg = ''
    wsoff = 0
    ost_flags = 'sc1'
    xtouch = 0
    wdes = '12,12,13,14,14,14'
    olead3 = 72
    d3 = 16
    t_flags = ''
    wt_flags = ''
    wtlead = 700
    fallback = 1


STAMP_NAMES = {}
class Stamper:
    def __init__(self, on, dbg=''): self.on, self.n = on, 0; self.names = []; self.dbg = dbg
    def _w(self, op, name):
        r = S(sSTAMP0, 2); i = self.n; self.n += 1; self.names.append(name)
        assert self.n <= 64
        return [raw(f"{op} {r}", 'smem', wr=[r]), wait_all(vm=False),
                raw(f"v_writelane_b32 v255, {r[0]}, {i}", 'valu', wr=[V(255)], rd=[r[0]])]
    def start(self):
        return self._w("s_memrealtime", "rt0") + self._w("s_memtime", "t0") if self.on else []
    def stamp(self, name=""):
        return self._w("s_memtime", name) if self.on else []
    def flush(self, vt, kidx):
        if not self.on: return []
        ops = self._w("s_memrealtime", "rt1")
        ops.append(salu("s_lshl_b32", sT0, S(2), 2)); ops.append(salu("s_add_u32", sT0, sT0, sWAVE))
        ops.append(salu("s_lshl_b32", sT0, sT0, 8)); ops.append(salu("s_add_u32", sT0, sT0, kidx << 20))
        ops += lane_id(vt[0])
        ops.append(valu("v_lshlrev_b32", vt[0], 2, vt[0]))
        ops.append(buf_store("buffer_store_dword", V(255), vt[0], rST, sT0, 0))
        ops.append(wait_all())
        STAMP_NAMES[kidx] = self.names
        if self.dbg:
            sel = self.dbg.split(',')
            slots = [1, 2, 3, 5, 6, 7, 9, 10, 11, 13, 14, 15]
            ops.append(salu("s_lshl_b32", sT0, S(2), 2)); ops.append(salu("s_add_u32", sT0, sT0, sWAVE))
            ops.append(salu("s_cmp_lg_u32", None, sT0, 4 * 77)); ops.append(raw("s_cbranch_scc1 L_end", 'branch'))
            for nm, sl in zip(sel, slots):
                ref = 'rt0' if nm == 'rt1' else 't0'
                ops.append(raw(f"v_readlane_b32 {sT1}, v255, {self.names.index(nm)}", 'readlane', wr=[sT1], rd=[V(255)]))
                ops.append(raw(f"v_readlane_b32 {sT2}, v255, {self.names.index(ref)}", 'readlane', wr=[sT2], rd=[V(255)]))
                ops.append(salu("s_sub_u32", sT1, sT1, sT2))
                ops.append(valu("v_mov_b32", vt[1], sT1)); ops.append(valu("v_mov_b32", vt[2], 4 * sl))
                ops.append(buf_store("buffer_store_dword", vt[1], vt[2], rDB, 0, 0)); ops.append(wait_all())
        return ops


def lane_id(v):
    return [raw(f"v_mbcnt_lo_u32_b32 {v}, -1, 0", 'valu', wr=[v]), raw(f"v_mbcnt_hi_u32_b32 {v}, -1, {v}", 'valu', wr=[v], rd=[v])]


def srd(ops, r, ptr, off_lo=None, off_hi=None, size=0):
    if off_lo is None:
        ops.append(salu("s_mov_b32", r[0], ptr[0])); ops.append(salu("s_mov_b32", r[1], ptr[1]))
    else:
        ops.append(salu("s_add_u32", r[0], ptr[0], off_lo))
        ops.append(salu("s_addc_u32", r[1], ptr[1], off_hi if off_hi is not None else 0))
    ops.append(salu("s_mov_b32", r[2], size)); ops.append(salu("s_mov_b32", r[3], "0x20000"))


def kd(name, nv=512, acc=256):
    return f""".section .rodata,"a"
.p2align 6
.amdhsa_kernel {name}
  .amdhsa_next_free_vgpr {nv}
  .amdhsa_next_free_sgpr 102
  .amdhsa_accum_offset {acc}
  .amdhsa_group_segment_fixed_size 0
  .amdhsa_kernarg_size 64
  .amdhsa_user_sgpr_count 2
  .amdhsa_user_sgpr_kernarg_segment_ptr 1
  .amdhsa_system_sgpr_workgroup_id_x 1
.end_amdhsa_kernel
"""

WB = [0, 16384, 32768, 49152]
XB = [65536, 65536 + 24576]
vWR = V(192, 8); vXR = V(200, 2); vWD = V(202, 4); vXD = V(206, 4); vTMP = V(210, 18)
vNEGM = V(228, 12); vKR = V(240, 4); vKD = V(244, 4); vVD = V(248, 4); vOST = V(252); vT3 = V(253, 2)
vR = V(228, 3); vWOR = V(231); vFA = V(232); vFD = V(233); vFP = V(234); vFG = V(235); vWT = V(236)
aFR = A(96, 48); aX = A(144, 24); aXF = A(144, 36); aL = A(168, 12); aONE = A(180, 4); aST = A(184, 16)
aOUT = A(172, 84)
ST_VR, ST_WOD, ST_WOR, ST_FA, ST_L16, ST_KG, ST_FG, ST_DA, ST_KW, ST_WT = 0, 4, 8, 9, 10, 11, 12, 13, 14, 15

def Qacc(t, n): return V((t * 3 + n) * 4, 4)
def Qf(s, n): return A((s * 3 + n) * 4, 4)
def SB(u): return 180 if u % 2 == 0 else 204
def Sreg(u, kt, n): return V(SB(u) + (kt * 3 + n) * 4, 4)
def Preg(u, n): return V((12 * u if u < 15 else 180) + 4 * n, 4)
OBUF = [200, 0, 48, 0]
def Oacc(sl, t, n): return A(OBUF[sl] + (t * 3 + n) * 4, 4)
def Out(nt, n): return aOUT[(nt * 3 + n) * 4:(nt * 3 + n) * 4 + 4]
BBUF = [A(144, 24), A(0, 24), A(24, 24)]


def kernel(cfg):
    st = Stamper(cfg.stamps, cfg.dbg)
    NFR = cfg.nfr
    pro = [Ins(f".globl {KNAME}", 'dir'), Ins(".p2align 8", 'dir'), Ins(f".type {KNAME},@function", 'dir'), label(KNAME)]
    P = pro.append
    P(salu("s_cmp_ge_u32", None, S(2), 256)); P(raw("s_cbranch_scc1 L_end", 'branch'))
    P(raw("s_load_dwordx16 s[16:31], s[0:1], 0", 'smem', wr=[S(16, 16)]))
    pro += st.start()
    vl, vw, vg, vm, va, vb, vc, vd, r4, cc, ve = [V(i) for i in range(1, 12)]
    P(valu("v_and_b32", vl, 63, V(0))); P(valu("v_lshrrev_b32", vw, 6, V(0)))
    P(valu("v_lshrrev_b32", vg, 4, vl))
    P(valu("v_readfirstlane_b32", sWAVE, vw))
    P(valu("v_and_b32", vm, 15, vl))
    P(salu("s_and_b32", sT0, S(2), 7)); P(salu("s_lshr_b32", sT1, S(2), 3))
    P(salu("s_lshr_b32", sB, sT0, 2)); P(salu("s_lshl_b32", sB, sB, 3)); P(salu("s_lshr_b32", sIB, sT1, 2)); P(salu("s_add_u32", sB, sB, sIB))
    P(salu("s_and_b32", sJH, sT0, 3)); P(salu("s_and_b32", sIH, sT1, 3)); P(salu("s_lshl_b32", sH, sJH, 2)); P(salu("s_add_u32", sH, sH, sIH))
    P(salu("s_lshl_b32", sM0K, sWAVE, 12)); P(salu("s_mul_i32", sM0X, sWAVE, 6144))
    P(valu("v_lshrrev_b32", va, 5, vl))
    P(valu("v_and_b32", vb, 1, vw)); P(valu("v_lshlrev_b32", vb, 3, vb))
    P(valu("v_and_b32", vc, 31, vl))
    P(valu("v_lshl_add_u32", ve, vw, 3, va)); P(valu("v_lshlrev_b32", ve, 13, ve))
    for i in range(2):
        P(valu("v_lshl_add_u32", vd, va, 1, vb))
        if i: P(valu("v_add_u32", vd, 4, vd))
        P(valu("v_xor_b32", vd, vd, vc)); P(valu("v_lshl_add_u32", vWD[i], vd, 4, ve))
        if i: P(valu("v_add_u32", vWD[i], 2 * 8192 - 1024, vWD[i]))
        P(valu("v_add_u32", vWD[i + 2], 4 * 8192 - 2048, vWD[i]))
    P(valu("v_mul_u32_u24", ve, 48, vw)); P(valu("v_lshrrev_b32", vd, 3, vl)); P(valu("v_add_u32", ve, ve, vd)); P(valu("v_mul_u32_u24", ve, 896, ve))
    P(valu("v_and_b32", vd, 7, vl)); P(valu("v_xor_b32", vd, vd, vg))
    P(valu("v_lshl_add_u32", vXD[0], vd, 4, ve))
    P(valu("v_xor_b32", vd, 4, vd)); P(valu("v_lshl_add_u32", vXD[1], vd, 4, ve)); P(valu("v_add_u32", vXD[1], 8 * 896 - 1024, vXD[1]))
    P(valu("v_add_u32", vXD[2], 16 * 896 - 2048, vXD[0])); P(valu("v_add_u32", vXD[3], 16 * 896 - 2048, vXD[1]))
    vTO = V(12); vt1, vt2 = V(13), V(14)
    if cfg.touch:
        P(valu("v_lshrrev_b32", vt1, 1, vw)); P(valu("v_add_u32", vt1, 4, vt1)); P(valu("v_lshlrev_b32", vt1, 5, vt1))
        P(salu("s_lshl_b32", sT0, sIB, 2)); P(valu("v_lshrrev_b32", vt2, 2, vl)); P(valu("v_add_u32", vt1, vt1, vt2)); P(valu("v_add_u32", vt1, sT0, vt1))
        P(valu("v_lshlrev_b32", vt1, 13, vt1)); P(valu("v_and_b32", vt2, 3, vl)); P(valu("v_lshl_add_u32", vt1, vt2, 7, vt1))
        P(valu("v_mov_b32", vTO, "0x7ff00000")); P(valu("v_cmp_gt_u32", "vcc", 16, vl)); P(valu("v_cndmask_b32", vt1, vTO, vt1, "vcc"))
        P(salu("s_mul_i32", sT0, sIH, 48)); P(valu("v_mul_u32_u24", vt2, 24, vw)); P(valu("v_add_u32", vt2, vt2, vl)); P(valu("v_add_u32", vt2, sT0, vt2))
        P(valu("v_mul_u32_u24", vt2, 896, vt2)); P(valu("v_subrev_u32", vt2, 24 * 896 - 256, vt2))
        P(valu("v_cmp_gt_u32", "vcc", 24, vl)); P(valu("v_cndmask_b32", vt2, vTO, vt2, "vcc"))
        P(salu("s_add_u32", sT0, sWAVE, 1)); P(salu("s_and_b32", sT0, sT0, 2))
        P(valu("v_mov_b32", vTO, sT0)); P(valu("v_cmp_eq_u32", "vcc", 0, vTO)); P(valu("v_cndmask_b32", vTO, vt2, vt1, "vcc"))
    P(wait_all(vm=False))
    P(salu("s_lshl_b32", sT1, sH, 9)); srd(pro, rWQ, P_WQ, sT1, 0, 447 * 8192 + 512)
    P(salu("s_mul_i32", sT1, sB, SQ * D * 2)); srd(pro, rX, P_X, sT1, 0, SQ * D * 2)
    def touch_ops(r):
        return [salu("s_mul_i32", sTO, sTS, r), buf_load("buffer_load_dword", A(248 + r % 7), V(227), rT, sTO, 0, cfg.t_flags)]
    def touch(r):
        if cfg.touch and cfg.xtouch: pro.extend(touch_ops(r))
    if cfg.touch: P(valu("v_mov_b32", V(227), vTO))
    if cfg.touch:
        P(salu("s_cmp_eq_u32", None, sT0, 0))
        for k_ in range(3): P(raw(f"s_cselect_b32 {rT[k_]}, {rWQ[k_]}, {rX[k_]}", 'salu', wr=[rT[k_]], rd=[rWQ[k_], rX[k_]]))
        P(salu("s_mov_b32", sT1, "0x80000"))
        P(salu("s_cmp_eq_u32", None, sT0, 0))
        P(raw(f"s_cselect_b32 {sTS}, {sT1}, 0x80", 'salu', wr=[sTS], rd=[sT1]))
        P(salu("s_mov_b32", rT[3], "0x20000")); P(salu("s_mov_b32", sTO, 0))

    def dma_w(s):
        out = []
        for i in range(4):
            pre = [salu("s_mov_b32", sW, s * 32 * 8192)] if i == 0 else []
            out.append((pre, salu("s_add_u32", "m0", sM0K, WB[s % 4]), buf_load_lds(vWD[i], rWQ, sW, i * 1024, cfg.q_flags)))
        return out
    def dma_x(j):
        out = []
        for i in range(6):
            pre = []
            if i == 0: pre = [salu("s_mov_b32", sX, j * 128)]
            if i == 4: pre = [salu("s_mov_b32", sX, j * 128 + 32 * 896)]
            out.append((pre, salu("s_add_u32", "m0", sM0X, XB[j % 2] + (4096 if i >= 4 else 0)),
                        buf_load_lds(vXD[i % 4], rX, sX, (i % 4) * 1024, cfg.q_flags)))
        return out
    def dma_kv(kv, slot):
        out = []
        for i in range(4):
            if kv < 16:
                pre = [salu("s_mov_b32", sKV, kv * 16384)] if i == 0 else []
                ld = buf_load_lds(vKD[i], rK, sKV, i * 1024, cfg.kv_flags)
            else:
                s_, kb = divmod(kv - 16, 4)
                pre = [salu("s_add_u32", sKV, sRV[s_], kb * 65536)] if i == 0 else []
                ld = buf_load_lds(vVD[i], rV, sKV, i * 1024, cfg.kv_flags)
            out.append((pre, salu("s_add_u32", "m0", sM0K, slot * 16384), ld))
        return out
    def dma_wo(sl, hh, slot):
        out = []
        for i in range(4):
            pre = [salu("s_add_u32", sW, sWH[hh], sRW[sl])] if i == 0 else []
            out.append((pre, salu("s_add_u32", "m0", sM0K, slot * 16384), buf_load_lds(vKD[i], rWO, sW, i * 1024, cfg.wo_flags)))
        return out
    def tag(lst):
        cur = None
        for pre, m0, ld in lst:
            if pre: cur = pre[0]
            ld.expect = [cur, m0]
        return lst
    _dw, _dx, _dkv, _dwo = dma_w, dma_x, dma_kv, dma_wo
    dma_w = lambda *a: tag(_dw(*a)); dma_x = lambda *a: tag(_dx(*a)); dma_kv = lambda *a: tag(_dkv(*a)); dma_wo = lambda *a: tag(_dwo(*a))
    def emit_now(lst):
        last = None
        for pre, m0, ld in lst:
            pro.extend(pre)
            if m0.text != last: P(m0); last = m0.text
            P(ld)
        return [ld.tok for _, _, ld in lst]

    wtok, xtok = {}, {}
    pgroups = [g.split(',') if g else [] for g in cfg.porder.split('|')]
    def pemit(k):
        for t in pgroups[k]:
            if t[0] == 'T': touch(int(t[1]))
            elif t[0] == 'W': wtok[int(t[1])] = emit_now(dma_w(int(t[1])))
            else: xtok[int(t[1])] = emit_now(dma_x(int(t[1])))
        pro.extend(st.stamp(f'p{k}'))
    pemit(0)
    P(salu("s_lshl_b32", sT0, sB, 4)); P(salu("s_add_u32", sT0, sT0, sH)); P(salu("s_lshl_b32", sT1, sT0, 18)); P(salu("s_lshr_b32", sT2, sT0, 14))
    srd(pro, rK, P_K, sT1, sT2, 262144); srd(pro, rV, P_V, sT1, sT2, 262144)
    P(salu("s_mov_b32", sC[0], hex(QSCALE))); P(salu("s_mov_b32", sC[1], hex(QSCALE)))
    P(valu("v_lshrrev_b32", r4, 2, vm)); P(valu("v_and_b32", cc, 3, vm))
    P(valu("v_lshlrev_b32", ve, 9, va)); P(valu("v_lshl_add_u32", ve, vw, 12, ve))
    for i in range(4):
        P(valu("v_add_u32", vd, 2 * i, va)); P(valu("v_add_u32", vd, vd, vb)); P(valu("v_xor_b32", vd, vd, vc))
        P(valu("v_lshl_add_u32", vKD[i], vd, 4, ve))
    P(valu("v_and_b32", va, 1, vg)); P(valu("v_lshl_add_u32", va, va, 2, r4)); P(valu("v_lshlrev_b32", va, 1, va))
    P(valu("v_lshrrev_b32", vb, 1, cc))
    P(valu("v_lshl_add_u32", vc, vg, 3, r4)); P(valu("v_lshlrev_b32", vc, 9, vc))
    P(valu("v_and_b32", vd, 1, cc)); P(valu("v_lshl_add_u32", vc, vd, 3, vc))
    for tb in range(8):
        P(valu("v_add_u32", vd, 2 * tb, vb)); P(valu("v_xor_b32", vd, vd, va)); P(valu("v_lshl_add_u32", vWR[tb], vd, 4, vc))
    P(valu("v_lshrrev_b32", vd, 1, vm)); P(valu("v_xor_b32", vd, vd, vg)); P(valu("v_lshlrev_b32", vd, 4, vd))
    P(valu("v_lshl_add_u32", vXR[0], vm, 7, vd)); P(valu("v_add_u32", vXR[0], sM0X, vXR[0])); P(valu("v_add_u32", vXR[0], XB[0], vXR[0]))
    P(valu("v_xor_b32", vXR[1], 64, vXR[0]))
    if cfg.ctouch:
        P(raw("s_getpc_b64 s[100:101]", 'salu', wr=[S(100, 2)]))
        P(salu("s_lshr_b32", sT0, S(2), 3)); P(salu("s_lshl_b32", sT0, sT0, 2)); P(salu("s_add_u32", sT0, sT0, sWAVE)); P(salu("s_lshl_b32", sT0, sT0, 9))
        P(valu("v_and_b32", vd, 3, vl)); P(valu("v_lshlrev_b32", vd, 7, vd)); P(valu("v_add_u32", vd, sT0, vd))
        cl_ = Ins(f"global_load_dword a255, {vd}, s[100:101]", 'vmem', A(255).set(), vd.set() | S(100, 2).set()); cl_.tok = Tok('vm'); P(cl_)
    pemit(1)
    P(valu("v_lshlrev_b32", vd, 1, vg)); P(valu("v_and_b32", vc, 7, vl)); P(valu("v_xor_b32", vd, vd, vc)); P(valu("v_lshlrev_b32", vd, 4, vd))
    P(valu("v_lshrrev_b32", vc, 3, vl)); P(valu("v_lshl_add_u32", vc, vw, 5, vc)); P(valu("v_lshl_add_u32", vVD[0], vc, 9, vd))
    for i in range(1, 4): P(valu("v_add_u32", vVD[i], i * (4096 - 1024), vVD[0]))
    if cfg.vhack:
        for i in range(4): P(valu("v_mov_b32", vVD[i], vKD[i]))
    P(valu("v_and_b32", va, 1, vg)); P(valu("v_lshlrev_b32", va, 1, va)); P(valu("v_lshrrev_b32", vd, 1, vg)); P(valu("v_or_b32", va, va, vd))
    for sb in range(4):
        P(valu("v_add_u32", vd, 4 * sb, va)); P(valu("v_xor_b32", vd, vd, vm)); P(valu("v_lshlrev_b32", vd, 4, vd))
        P(valu("v_lshl_add_u32", vKR[sb], vm, 9, vd))
    P(valu("v_lshlrev_b32", vd, 4, va)); P(valu("v_lshl_add_u32", vd, vm, 9, vd)); P(valu("v_accvgpr_write_b32", aST[ST_KG], vd))
    P(valu("v_lshrrev_b32", va, 1, r4)); P(valu("v_lshl_add_u32", va, vg, 1, va)); P(valu("v_and_b32", va, 3, va)); P(valu("v_lshlrev_b32", va, 1, va))
    P(valu("v_lshl_add_u32", ve, vg, 2, r4))
    P(valu("v_lshlrev_b32", vc, 7, ve)); P(valu("v_and_b32", vd, 1, cc)); P(valu("v_lshl_add_u32", vc, vd, 3, vc))
    for t in range(4):
        P(valu("v_add_u32", vd, 2 * t, vb)); P(valu("v_xor_b32", vd, vd, va)); P(valu("v_lshl_add_u32", vd, vd, 4, vc))
        P(valu("v_accvgpr_write_b32", aST[ST_VR + t], vd))
    P(valu("v_mul_u32_u24", vd, 224, ve)); P(valu("v_lshl_add_u32", vd, cc, 3, vd)); P(valu("v_accvgpr_write_b32", aST[ST_WOR], vd))
    P(salu("s_mov_b32", sT0, 4682))
    for i in range(4):
        P(valu("v_lshl_add_u32", va, vw, 8, vl));
        if i: P(valu("v_add_u32", va, 64 * i, va))
        P(valu("v_mul_u32_u24", vc, sT0, va)); P(valu("v_lshrrev_b32", vc, 16, vc))
        P(valu("v_mul_u32_u24", vd, 14, vc)); P(valu("v_sub_u32", vd, va, vd))
        P(valu("v_mul_u32_u24", vc, 896, vc)); P(valu("v_lshl_add_u32", vc, vd, 4, vc))
        if i: P(valu("v_subrev_u32", vc, i * 1024, vc))
        P(valu("v_mov_b32", vd, "0x7ff00000"))
        P(valu("v_cmp_gt_u32", "vcc", 896, va)); P(valu("v_cndmask_b32", vc, vd, vc, "vcc"))
        P(valu("v_accvgpr_write_b32", aST[ST_WOD + i], vc))
    pemit(2)
    P(salu("s_mul_i32", sT0, sWAVE, 128 * 3072)); P(valu("v_lshlrev_b32", vOST, 4, vl)); P(valu("v_accvgpr_write_b32", aST[ST_L16], vOST))
    P(valu("v_add_u32", vOST, sT0, vOST))
    P(salu("s_lshl_b32", sT0, sB, 12)); P(salu("s_add_u32", sT0, sT0, WS_FL + (cfg.wsoff << 20))); srd(pro, rFL, P_WS, sT0, 0, 4096)
    srd(pro, rDB, P_DBG, None, None, 256)
    P(salu("s_lshl_b32", sT0, sH, 8)); P(salu("s_lshl_b32", sT1, sB, 4))
    P(valu("v_mov_b32", vd, "0x7ff00000")); P(valu("v_mov_b32", vc, sT0)); P(valu("v_mov_b32", va, sT1))
    P(valu("v_cmp_eq_u32", "vcc", 0, V(0))); P(valu("v_cndmask_b32", vc, vd, vc, "vcc")); P(valu("v_cndmask_b32", va, vd, va, "vcc"))
    P(valu("v_accvgpr_write_b32", aST[ST_FA], vc)); P(valu("v_accvgpr_write_b32", aST[ST_DA], va))
    P(valu("v_mov_b32", vd, 0))
    zst = buf_store("buffer_store_dword", vd, vc, rFL, 0, 0, "sc1"); P(zst)
    P(salu("s_lshl_b32", sT0, sJH, 10)); P(valu("v_and_b32", va, 3, vl)); P(valu("v_lshlrev_b32", va, 8, va)); P(valu("v_add_u32", va, sT0, va))
    P(valu("v_accvgpr_write_b32", aST[ST_FG], va))
    P(valu("v_lshlrev_b32", va, 4, vl)); P(valu("v_add_u32", va, sM0K, va)); P(valu("v_accvgpr_write_b32", aST[ST_KW], va))
    P(salu("s_mul_i32", sT0, sB, 4 * 128 * 3072)); P(salu("s_mul_i32", sT1, sJH, 32 * 3072)); P(salu("s_add_u32", sT0, sT0, sT1))
    P(salu('s_add_u32', sT0, sT0, cfg.wsoff << 20))
    srd(pro, rOF, P_WS, sT0, 0, 3 * 128 * 3072 + 32 * 3072)
    P(salu("s_mul_i32", sOSB, sIH, 8 * 3072))
    P(salu("s_mul_i32", sT0, sJH, 1024 * 896)); P(salu("s_mul_i32", sT1, sIH, 224)); P(salu("s_add_u32", sT0, sT0, sT1))
    srd(pro, rWO, P_WO, sT0, 0, 1023 * 896 + 224)
    P(salu("s_lshl_b32", sT0, sB, 2)); P(salu("s_add_u32", sT0, sT0, sIH)); P(salu("s_mul_i32", sT0, sT0, 16 * 12288)); P(salu("s_add_u32", sT0, sT0, WS_PT + (cfg.wsoff << 20)))
    srd(pro, rPT, P_WS, sT0, 0, 16 * 12288)
    P(salu("s_mul_i32", sT0, sB, 192 * 896)); P(salu("s_mul_i32", sT2, sJH, 48 * 896)); P(salu("s_add_u32", sT0, sT0, sT2)); P(salu("s_add_u32", sT0, sT0, sT1))
    srd(pro, rOUT, P_OUT, sT0, 0, 47 * 896 + 224)
    srd(pro, rST, P_WS, WS_STAMP, 0, 128 << 20)
    P(salu("s_mov_b32", S(86), 0))
    P(salu("s_lshr_b32", sT0, S(2), 6)); P(salu("s_lshl_b32", sT0, sT0, 8)); P(salu("s_lshr_b32", sT1, S(2), 3)); P(salu("s_and_b32", sT1, sT1, 7))
    P(salu("s_lshl_b32", sT1, sT1, 3)); P(salu("s_add_u32", sT0, sT0, sT1)); P(salu("s_lshl_b32", sT1, sWAVE, 1)); P(salu("s_add_u32", sT0, sT0, sT1))
    P(salu("s_mul_i32", sT0, sT0, 896))
    P(valu("v_lshlrev_b32", va, 7, vl)); P(valu("v_add_u32", va, sT0, va))
    P(valu("v_mov_b32", vd, "0x7ff00000")); P(valu("v_cmp_gt_u32", "vcc", 14, vl)); P(valu("v_cndmask_b32", va, vd, va, "vcc"))
    P(valu("v_accvgpr_write_b32", aST[ST_WT], va))
    P(salu("s_mul_i32", sT0, sJH, 1024 * 896))
    late_srd = []; srd(late_srd, rT, P_WO, sT3, 0, 1024 * 896); late_srd = [salu("s_mul_i32", sT3, sJH, 1024 * 896)] + late_srd
    for hh in range(4):
        P(salu("s_add_u32", sT0, sIH, hh + 1)); P(salu("s_and_b32", sT0, sT0, 3))
        P(salu("s_mul_i32", sOH[hh], sT0, 8 * 3072)); P(salu("s_mul_i32", sWH[hh], sT0, 256 * 896))
    for sl in range(4):
        if cfg.rot: P(salu("s_add_u32", sT0, sB, sl)); P(salu("s_and_b32", sT0, sT0, 3))
        else: P(salu("s_mov_b32", sT0, sl))
        P(salu("s_lshl_b32", sRV[sl], sT0, 7)); P(salu("s_mul_i32", sRO[sl], sT0, 6144)); P(salu("s_mul_i32", sRW[sl], sT0, 64 * 896))
    P(valu("v_mov_b32", vd, "0x3f803f80"))
    for i in range(4): P(valu("v_accvgpr_write_b32", aONE[i], vd))

    T = Timeline()
    def fr(f): return aFR[(f % NFR) * 4:(f % NFR) * 4 + 4]
    plan = []
    fctr = [0]
    def add_unit(kind, idx, nf, mk, pre_extra=(), post_extra=()):
        for e in pre_extra: T.add(e)
        base = len(T.m); f0 = fctr[0]; fctr[0] += nf
        mf = mk(f0)
        for m in mf: T.add(m)
        for e in post_extra: T.add(e)
        plan.append(dict(kind=kind, idx=idx, base=base, mf=mf, nf=nf, f0=f0, end=len(T.m)))
    def ones(u, first=False):
        return [mfma16(aL[4 * n:4 * n + 4], aONE, Preg(u, n), 0 if first else aL[4 * n:4 * n + 4]) for n in range(3)]
    for s in range(14):
        add_unit('q', s, 16, lambda f0: [mfma16(Qacc(t, n), fr(f0 + t), aXF[(s % 3) * 12 + 4 * n:(s % 3) * 12 + 4 * n + 4], Qacc(t, n) if s else 0)
                                         for t in range(16) for n in range(3)])
    def conv_ops():
        conv = []
        pend = None
        for tp in range(8):
            for n in range(3):
                a4, b4 = Qacc(2 * tp, n), Qacc(2 * tp + 1, n)
                tq = vTMP[4 * ((tp * 3 + n) % 4):4 * ((tp * 3 + n) % 4) + 4]
                for r in (a4, b4):
                    conv.append(valu("v_pk_mul_f32", r[0:2], r[0:2], sC)); conv.append(valu("v_pk_mul_f32", r[2:4], r[2:4], sC))
                conv.append(valu("v_cvt_pk_bf16_f32", tq[0], a4[0], a4[1])); conv.append(valu("v_cvt_pk_bf16_f32", tq[2], b4[0], b4[1]))
                conv.append(valu("v_cvt_pk_bf16_f32", tq[1], a4[2], a4[3])); conv.append(valu("v_cvt_pk_bf16_f32", tq[3], b4[2], b4[3]))
                if pend: conv += pend
                qf = Qf(tp, n)
                pend = [valu("v_permlane16_swap_b32", tq[0], tq[2]), valu("v_permlane16_swap_b32", tq[1], tq[3])] + \
                       [valu("v_accvgpr_write_b32", qf[k_], tq[k_]) for k_ in range(4)]
        conv += pend
        groups = []; cur = []; c = 0
        for o in conv:
            cur.append(o); c += vcost(o)
            if c >= 4: groups.append(cur); cur = []; c = 0
        if cur: groups.append(cur)
        return groups
    qend = len(T.m)
    if cfg.stamps: T.raw(qend, *st.stamp('conv0'))
    for g_ in conv_ops(): T.add(g_)
    if cfg.stamps: T.raw(len(T.m), *st.stamp('conv1'))
    for u in range(16):
        add_unit('k', u, 16, lambda f0: [mfma16(Sreg(u, kt, n), fr(f0 + 2 * s + kt), Qf(s, n),
                                                Sreg(u, kt, n) if s else (0 if u < 2 else vNEGM[4 * n:4 * n + 4]))
                                         for s in range(8) for kt in range(2) for n in range(3)],
                 pre_extra=ones(u - 2, u == 2) if u >= 2 else ())
    def pv_mf(sl, kb, frf):
        return [mfma16(Oacc(sl, t, n), frf(4 * ks + t), Preg(4 * kb + ks, n), Oacc(sl, t, n) if (kb or ks) else 0)
                for ks in range(4) for t in range(4) for n in range(3)]
    def add_v(i):
        sl, kb = divmod(i, 4)
        first = i == 0
        add_unit('v', i, 16, lambda f0: pv_mf(sl, kb, lambda i_: fr(f0 + i_)),
                 pre_extra=ones(14) if first else (), post_extra=ones(15) if first else ())
    opn = [0]
    BB = {(0, 0): A(144, 24), (0, 1): V(0, 24), (0, 2): V(24, 24), (1, 0): V(48, 24), (1, 1): V(72, 24), (1, 2): V(96, 24),
          (2, 0): V(120, 24), (2, 1): A(48, 24), (2, 2): A(72, 24), (3, 0): V(144, 24), (3, 1): V(168, 24), (3, 2): A(0, 24)}
    def add_o(sl, hh):
        first = opn[0] == 0; opn[0] += 1
        bb = V(192, 24) if hh == 3 else BB[sl, hh]
        add_unit('o', 4 * sl + hh, 14, lambda f0: [mfma16(Out(nt, n), fr(f0 + 7 * tt + nt), bb[12 * tt + 4 * n:12 * tt + 4 * n + 4],
                                                          Out(nt, n) if (tt or not first) else 0)
                                                   for tt in range(2) for nt in range(7) for n in range(3)])
        plan[-1]['bb'] = bb
    for i in range(7): add_v(i)
    add_o(0, 3)
    for i in range(7, 11): add_v(i)
    add_o(1, 3)
    for i in range(11, 15): add_v(i)
    add_o(2, 3); add_v(15)
    for hh in range(3): add_o(0, hh)
    add_o(3, 3)
    for sl in (1, 2, 3):
        for hh in range(3): add_o(sl, hh)
    end_pos = len(T.m)
    NU = len(plan)
    def unit_index(kind, idx): return next(i for i, u in enumerate(plan) if u['kind'] == kind and u['idx'] == idx)

    for ui, un in enumerate(plan):
        nf = un['nf']; base = un['base']
        un['rlast'] = base + 3 * (nf - 1) - 3 * (NFR - 1) + 2
        un['bar'] = 0 if ui == 0 else plan[ui - 1]['rlast'] + 8
        un['rfirst'] = un['bar'] + 1 if ui else 0
    def release_pos(ui):
        if plan[ui]['kind'] == 'v' and plan[ui]['idx'] == 0 and cfg.fallback: return plan[ui + 2]['bar']
        return plan[ui + 1]['bar'] if ui + 1 < NU else end_pos

    dma_busy = set()
    def put_dma(item, p):
        pre, m0, ld = item
        p = max(p, 1)
        while (p in dma_busy) or (p - 1 in dma_busy) or not T.free(p, ld) or not T.free(p - 1, m0): p += 1
        dma_busy.add(p); dma_busy.add(p - 1)
        for x in pre: T.put(p - 1, x)
        T.put(p - 1, m0); T.put(p, ld)
        return p

    for ui, un in enumerate(plan):
        un['barins'] = barrier(needs=[])
        T.head(un['bar'], un['barins']); T.gap(un['bar'])['ns'] += 1
        if cfg.stamps and (ui % 2 == 0 or ui <= 16): T.gap(un['bar'])['head'] += st.stamp(f"{un['kind']}{un['idx']}")

    bar = lambda ui: plan[ui]['bar']
    U = unit_index
    v0 = plan[U('v', 0)]
    free_at = {7: 0, 8: 0, 9: 0, 2: bar(11), 6: bar(11), 3: bar(12), 0: bar(13), 4: bar(13), 5: bar(13), 1: bar(14)}
    regk = {3 + k_: (16 * k_ if k_ < 6 else 200 + 16 * (k_ - 6)) for k_ in range(cfg.nreg)}
    pvstart = plan[U('v', 4)]['base']
    epi_win = {}; pub_ui = {}; ckpos = {}; st_win = {}
    stdelay = [int(x) for x in str(cfg.stdelay).split(',')]
    for sl in range(4):
        e0 = plan[U('v', 4 * sl + 3)]['end'] + 4
        e1 = e0 + (cfg.epilen if sl < 3 else cfg.epilen3)
        epi_win[sl] = (e0, e1)
        sg = cfg.stgap if sl < 3 else cfg.stgap3
        step = (e1 - e0) // 6 + 1
        st_win[sl] = [max(e0 + (k_ + 1) * step + 2, e0 + stdelay[sl] + k_ * sg) for k_ in range(6)]
        se = st_win[sl][-1] + 12
        pub_ui[sl] = next(i_ for i_ in range(NU) if bar(i_) >= se + cfg.publag)
        ob = plan[U('o', 4 * sl)]['base']
        ckpos[sl] = min(bar(pub_ui[sl]) + cfg.cklag, ob - cfg.olead)
        assert ckpos[sl] > bar(pub_ui[sl]) + 8
    streams = {k_: [] for k_ in ('kv', 'w', 'x', 'ol', 't', 'wr', 'st')}
    done_pro = set(t for g in pgroups[:3] for t in g)
    for s_ in range(14):
        if f"W{s_}" not in done_pro:
            streams['w'].append(dict(kind='W', id=s_, n=4, rel=bar(s_ - 3) + 2 if s_ >= 4 else 1, need=bar(s_)))
    for j_ in range(7):
        if f"X{j_}" not in done_pro:
            streams['x'].append(dict(kind='X', id=j_, n=6, rel=bar(2 * j_ - 3) + 2 if j_ >= 2 else 1, need=bar(2 * j_)))
    if cfg.touch and cfg.xtouch:
        for r in range(5):
            rel = max(1, bar(2 * r + 1) - cfg.tlead)
            streams['t'].append(dict(kind='T', id=r, n=1, rel=rel, need=rel + 10 if r else bar(2) + 1))
    for kv in range(32):
        ui = U('k', kv) if kv < 16 else U('v', kv - 16)
        streams['kv'].append(dict(kind='KV', id=kv, ui=ui, n=4, rel=cfg.kv0, need=bar(ui), slot=kv not in regk))
    ounits = [i_ for i_ in range(NU) if plan[i_]['kind'] == 'o']
    wt_rel = {}
    for sl in range(4):
        first_need = min(bar(i_) for i_ in ounits if plan[i_]['idx'] // 4 == sl)
        rel = max(v0['end'] + 2 + 6 * sl, first_need - cfg.wtlead) if not cfg.rot else v0['end'] + 2 + cfg.wtsp * sl
        wt_rel[sl] = rel
        if cfg.touch: streams['t'].append(dict(kind='WT', id=sl, n=1, rel=rel, need=rel + 10))
    for i_ in ounits:
        sl, hh = divmod(plan[i_]['idx'], 4)
        rel = max(bar(i_) - cfg.womaxlead, min(wt_rel[3 if cfg.rot else sl] + cfg.wtgap, bar(i_) - 110))
        streams['w'].append(dict(kind='WO', id=(sl, hh), ui=i_, n=4, rel=rel, need=bar(i_), slot=True))
    for sl in range(4):
        for hh in range(3):
            i_ = U('o', 4 * sl + hh); bb = plan[i_]['bb']
            rel = ckpos[sl] + 1
            if bb.k == 'a' and bb.i < 48: rel = max(rel, epi_win[3][1] + 2)
            elif bb.k == 'a' and bb.i < 96: rel = max(rel, epi_win[2][1] + 2)
            if bb.k == 'v': rel = max(rel, plan[U('v', 12 + (bb.i + 23) // 48)]['end'] + 1)
            rel = max(rel, plan[i_]['base'] - cfg.olmax)
            streams['ol'].append(dict(kind='OL', id=(sl, hh), ui=i_, n=6, rel=rel, need=plan[i_]['base']))
    for sl in range(4):
        for k_ in range(6): streams['st'].append(dict(kind='ST', id=(sl, k_), n=1, rel=st_win[sl][k_], need=st_win[sl][k_] + 12))
    sched = []
    nxt_any = 1; nxt_hbm = cfg.kv0
    wo_res = []
    p = 1
    while any(streams.values()):
        assert p < end_pos + 50, [(k_, v_[0]) for k_, v_ in streams.items() if v_]
        fs = sorted(s_ for s_ in free_at if free_at[s_] + 2 <= p)
        if streams['wr'] and streams['wr'][0]['rel'] <= p and fs:
            g = streams['wr'].pop(0); g['slot'] = fs[0]; g['pos'] = p
            plan[g['ui']]['slot'] = fs[0]; free_at[fs[0]] = release_pos(g['ui']); sched.append(g); fs = fs[1:]
            if streams['wr']: streams['wr'][0]['rel'] = max(streams['wr'][0]['rel'], p + 12)
        if p >= nxt_any:
            cands = []
            for k_, q in streams.items():
                if not q or k_ == 'wr': continue
                g = q[0]; i_ = len(g.setdefault('pos', []))
                if p < g['rel']: continue
                dl = g['need'] - (cfg.minlead - 12 * i_ if k_ == 'kv' else 0)
                if g.get('slot') is True:
                    resv = len([w for w in streams['wr'] if w['rel'] <= p + 30])
                    if len(fs) <= resv and not (k_ == 'kv' and p >= dl): continue
                    if not fs: continue
                    if g['kind'] == 'WO' and streams['kv'] and p < g['need'] - 150:
                        if len(fs) < 2 or len([r_ for r_ in wo_res if r_ > p]) >= cfg.womax: continue
                if k_ == 'kv' and p < nxt_hbm and p < dl: continue
                cands.append((dl if k_ != 'kv' else min(dl, p + cfg.kvprio), k_))
            if cands:
                _, k_ = min(cands); g = streams[k_][0]
                if g.get('slot') is True:
                    g['slot'] = fs[0]; plan[g['ui']]['slot'] = fs[0]; free_at[fs[0]] = release_pos(g['ui'])
                    if g['kind'] == 'WO': wo_res.append(release_pos(g['ui']))
                g['pos'].append(p)
                nxt_any = p + (cfg.ga if p > 40 else 2)
                if k_ == 'kv': nxt_hbm = p + (cfg.d1 if p < qend else (cfg.d2 if p < pvstart else cfg.d3))
                if len(g['pos']) == g['n']:
                    streams[k_].pop(0); sched.append(g)
                    if g['kind'] == 'KV' and g['id'] in regk:
                        rk_ = regk[g['id']]
                        streams['wr'].append(dict(kind='WR', id=g['id'], ui=g['ui'], rel=min(p + cfg.wrlag, qend - 30 + rk_) if rk_ < 96 else bar(g['ui']) - 75))
        p += 1

    region = {'kv': 0, 'wo': 0}
    use_end = {}
    for ui, un in enumerate(plan):
        base, kind, idx, nf = un['base'], un['kind'], un['idx'], un['nf']
        r0, r1 = un['rfirst'], max(un['rlast'], un['rfirst'])
        toks = []; xtk = []
        if kind == 'q':
            if idx % 2 == 0:
                xb = XB[(idx // 2) % 2] - XB[0]
                for par in range(2):
                    for n in range(3):
                        g_ = (idx + par) % 3
                        r = ds_read("ds_read_b128", aXF[g_ * 12 + 4 * n:g_ * 12 + 4 * n + 4], vXR[par], xb + n * 2048)
                        if ui: T.place(r, r0 + 2 + 3 * (3 * par + n), r0 + 24)
                        elif par == 0: T.put(0, r)
                        else: T.place(r, 3 + 3 * n, 12)
                        plan[ui + par]['mf'][n].needs.append(r.tok); xtk.append(r.tok)
        else:
            slot = un['slot']; regn = slot // 4; sbase = (slot % 4) * 16384
            adj = []
            if kind == 'v' and idx == 0:
                adj += [valu("v_accvgpr_read_b32", vKR[t], aST[ST_VR + t]) for t in range(4)]; region['kv'] = 0
            key = 'wo' if kind == 'o' else 'kv'
            d = regn - region[key]
            if d:
                lit = hex((d * 65536) & 0xffffffff)
                adj += [valu("v_add_u32", a_, lit, a_) for a_ in ([vWOR] if kind == 'o' else [vKR[i] for i in range(4)])]
                region[key] = regn
            un['region'] = regn
            if adj:
                T.chain(adj, plan[ui - 1]['rlast_actual'] + 1, hard_end=r0 - 1)
        lastp = r0
        for i in range(nf):
            f = un['f0'] + i
            pos = r0 + int(round(i * (r1 - r0) / (nf - 1.0)))
            if ui == 0: pos = max(0, base + 3 * i - 24)
            use_end[f] = base + 3 * i + 3
            if f >= NFR: pos = max(pos, use_end[f - NFR])
            if kind == 'q':
                a_, tb = divmod(i, 8)
                rs = [ds_read("ds_read_b64_tr_b16", fr(f)[2 * hh:2 * hh + 2], vWR[tb], WB[idx % 4] + a_ * 256 + hh * 2048) for hh in range(2)]
            elif kind == 'k':
                s_, kt = divmod(i, 2); a_, sb = divmod(s_, 4)
                rs = [ds_read("ds_read_b128", fr(f), vKR[sb], sbase + kt * 8192 + a_ * 256)]
            elif kind == 'v':
                ks, t = divmod(i, 4)
                rs = [ds_read("ds_read_b64_tr_b16", fr(f)[2 * hh:2 * hh + 2], vKR[t], sbase + ks * 4096 + hh * 2048) for hh in range(2)]
            else:
                tt, nt = divmod(i, 7)
                rs = [ds_read("ds_read_b64_tr_b16", fr(f)[2 * hh:2 * hh + 2], vWOR, sbase + tt * 7168 + hh * 3584 + nt * 32) for hh in range(2)]
            for r in rs:
                if ui == 0 and pos == 0: lastp = T.put(0, r)
                else: lastp = T.place(r, max(pos, lastp), max(pos, lastp) + 2)
                toks.append(r.tok)
            un.setdefault('ftok', []).append([r.tok for r in rs])
            un.setdefault('fpos', []).append(lastp)
        un['rlast_actual'] = lastp
        assert ui + 1 >= NU or lastp < plan[ui + 1]['bar'], (ui, lastp, plan[ui + 1]['bar'])
        if ui + 1 < NU: plan[ui + 1]['barins'].needs += toks[-2:] + xtk
        for i in range(0, nf, 2):
            nd = list(un['ftok'][i])
            if i + 1 < nf and un['fpos'][i + 1] < base + 3 * i - 5: nd += un['ftok'][i + 1]
            elif i + 1 < nf: un['mf'][3 * (i + 1)].needs += un['ftok'][i + 1]
            if ui == 0 and i == 0: un['mf'][0].needs += nd
            else:
                T.head(base + 3 * i, waitpt(nd), count=True)
            un['mf'][3 * i].needs += un['ftok'][i]

    rtok = {}; last_k_pos = 0; first_wo = 10 ** 9; st_g = {}
    ev = []
    for g in sched:
        k_ = g['kind']
        if k_ == 'WR': continue
        if k_ == 'W': items = dma_w(g['id']); wtok[g['id']] = [it[2].tok for it in items]
        elif k_ == 'X': items = dma_x(g['id']); xtok[g['id']] = [it[2].tok for it in items]
        elif k_ == 'WO': items = dma_wo(g['id'][0], g['id'][1], g['slot'])
        elif k_ == 'KV' and g['id'] not in regk: items = dma_kv(g['id'], g['slot'])
        elif k_ == 'KV':
            kv = g['id']; sdef = salu("s_mov_b32", sKV, kv * 16384); items = []
            for i_ in range(4):
                ld = buf_load("buffer_load_dwordx4", A(regk[kv] + 4 * i_, 4), vKD[i_], rK, sKV, i_ * 1024, cfg.kv_flags); ld.expect = [sdef]
                items.append(([sdef] if i_ == 0 else [], None, ld))
            rtok[kv] = [it[2].tok for it in items]
        elif k_ == 'T':
            o_ = touch_ops(g['id']); o_[1].expect = [o_[0]]; items = [([o_[0]], None, o_[1])]
        elif k_ == 'WT':
            sdef = salu("s_mov_b32", sTO, g['id'] * 64 * 896)
            tl_ = buf_load("buffer_load_dword", A(168 + g['id']), vWT, rT, sTO, 0, cfg.wt_flags); tl_.expect = [sdef]
            items = [([sdef], None, tl_)]
        elif k_ == 'ST':
            sl, kk = g['id']; tt, n = divmod(kk, 3)
            pre_ = []
            if kk == 0: pre_ = [salu("s_add_u32", sOS, sOSB, sRO[sl])]
            if kk == 3: pre_ = [salu("s_add_u32", sOS, sOS, 3072)]
            s_ = buf_store("buffer_store_dwordx4", V(192 + kk * 4, 4), vOST, rOF, sOS, n * 1024, cfg.ost_flags)
            items = [(pre_, None, s_)]
            st_g[sl, kk] = g
            if kk == 5: plan[pub_ui[sl]]['barins'].needs.append(s_.tok)
        elif k_ == 'OL':
            sl, hh = g['id']; un = plan[g['ui']]; bb = un['bb']; items = []
            for tt in range(2):
                sdef = salu("s_add_u32", sOL, sOH[hh], sRO[sl]) if tt == 0 else salu("s_add_u32", sOL, sOL, 3072)
                for n in range(3):
                    l_ = buf_load("buffer_load_dwordx4", bb[12 * tt + 4 * n:12 * tt + 4 * n + 4], vOST, rOF, sOL, n * 1024, "sc1"); l_.expect = [sdef]
                    un['mf'][21 * tt + n].needs.append(l_.tok)
                    items.append(([sdef] if n == 0 else [], None, l_))
        g['ap'] = []
        for it, p in zip(items, g['pos']): ev.append((p, it, g))
        if k_ in ('KV', 'WO') and not (k_ == 'KV' and g['id'] in regk): plan[g['ui']]['barins'].needs += [it[2].tok for it in items]
    ev.sort(key=lambda e: e[0])
    lastp = 0
    for p, it, g in ev:
        p = max(p, lastp + 1)
        if it[1] is not None: p = put_dma(it, p)
        else:
            while not T.free(p, it[2]): p += 1
            for x in it[0]: T.put(p, x)
            T.put(p, it[2])
        lastp = p; g['ap'].append(p)
    for g in sched:
        if g['kind'] in ('W', 'X', 'KV', 'WO', 'OL', 'ST'):
            assert g['ap'][-1] < g['need'], ("too late", g)
            if g['kind'] == 'KV' and g['id'] == 15: last_k_pos = g['ap'][-1]
            if g['kind'] == 'WO': first_wo = min(first_wo, g['ap'][0])
    print("leads:", " ".join(f"{g['kind']}{g['id']}:{g['need'] - g['ap'][-1]}".replace(" ", "") for g in sched if g['kind'] in ('W', 'X', 'KV', 'WO', 'OL')), file=sys.stderr)
    for s_ in range(14):
        plan[s_]['barins'].needs += wtok[s_] + (xtok[s_ // 2] if s_ % 2 == 0 else [])
    for g in sched:
        if g['kind'] != 'WR': continue
        kv = g['id']; un = plan[g['ui']]; slot = g['slot']
        tmp = V(226) if regk[kv] < 96 else vT3[0]
        ops = [valu("v_accvgpr_read_b32", tmp, aST[ST_KW])]
        if slot >= 4: ops.append(valu("v_add_u32", tmp, (slot // 4) * 65536, tmp))
        wt = []
        for i_ in range(4):
            w_ = ds_write("ds_write_b128", tmp, A(regk[kv] + 4 * i_, 4), (slot % 4) * 16384 + i_ * 1024, needs=[rtok[kv][i_]]); ops.append(w_); wt.append(w_.tok)
        ps = T.chain(ops, g['pos'])
        assert ps[-1] < un['bar'] - 4
        if regk[kv] < 96: assert ps[-1] < qend + (regk[kv] // 4) * 4 - 2 or ps[-1] < qend, (kv, ps, qend)
        else: assert ps[0] > plan[U('k', 6)]['base'] + 2, (kv, ps)
        un['barins'].needs += wt
    T.chain([valu("v_accvgpr_read_b32", vKD[i], aST[ST_WOD + i]) for i in range(4)], last_k_pos + 1, hard_end=first_wo - 2)

    def max_ops(srcs, n, ta, tb_):
        ops = []
        ops.append(valu("v_max3_f32", ta, srcs[0], srcs[1], srcs[2]))
        k = 3
        while k + 1 < len(srcs): ops.append(valu("v_max3_f32", ta, ta, srcs[k], srcs[k + 1])); k += 2
        if k < len(srcs): ops.append(valu("v_max_f32", ta, ta, srcs[k]))
        ops.append(valu("v_mov_b32", tb_, ta)); ops.append(valu("v_permlane16_swap_b32", ta, tb_)); ops.append(valu("v_max_f32", ta, ta, tb_))
        ops.append(valu("v_mov_b32", tb_, ta)); ops.append(valu("v_permlane32_swap_b32", ta, tb_)); ops.append(valu("v_max_f32", ta, ta, tb_))
        for k_ in range(4): ops.append(valu("v_sub_f32", vNEGM[4 * n + k_], 0, ta))
        return ops
    def softmax_ops(u, sreg, sub):
        ops = []; pend = None
        for n in range(3):
            for kt in range(2):
                s4 = sreg(kt, n); p = Preg(u, n)
                if sub:
                    for k_ in range(4): ops.append(valu("v_add_f32", s4[k_], s4[k_], vNEGM[4 * n]))
                for k_ in range(4):
                    ops.append(valu("v_exp_f32", s4[k_], s4[k_]))
                    if pend and k_ in (0, 2): ops.append(pend.pop(0))
                pend = [valu("v_cvt_pk_bf16_f32", p[2 * kt], s4[0], s4[1]), valu("v_cvt_pk_bf16_f32", p[2 * kt + 1], s4[2], s4[3])]
        return ops + pend
    for u in range(16):
        ops = []
        if u == 0:
            for n in range(3):
                ops += max_ops([Sreg(0, kt, n)[k_] for kt in range(2) for k_ in range(4)], n, vT3[0], vT3[1])
        ops += softmax_ops(u, lambda kt, n: Sreg(u, kt, n), u < 2)
        nxt = plan[14 + u + 1]
        b0 = nxt['base']
        T.chain(ops, b0 + 3, end=b0 + 46, hard_end=b0 + 47)

    chk = []
    for n in range(3): chk.append(valu("v_accvgpr_read_b32", vT3[0] if n == 0 else (vT3[1] if n == 1 else V(192)), aL[4 * n]))
    if cfg.fallback:
        chk.append(valu("v_max3_f32", V(193), vT3[0], vT3[1], V(192)))
        chk.append(valu("v_add_f32", V(194), vT3[0], vT3[1])); chk.append(valu("v_add_f32", V(194), V(194), V(192)))
        chk.append(salu("s_mov_b32", sT0, hex(L_LIMIT)))
        chk.append(valu("v_cmp_nge_f32", "vcc", sT0, V(194)))
        chk.append(raw("s_cbranch_vccnz L_fallback", 'branch', rd=['vcc']))
        chk.append(label("L_fb_ret"))
    chk.append(valu("v_rcp_f32", vR[0], vT3[0])); chk.append(valu("v_rcp_f32", vR[1], vT3[1])); chk.append(valu("v_rcp_f32", vR[2], V(192)))
    chk.append(valu("v_accvgpr_read_b32", vFA, aST[ST_FA])); chk.append(valu("v_accvgpr_read_b32", vFG, aST[ST_FG]))
    chk.append(valu("v_accvgpr_read_b32", vWOR, aST[ST_WOR])); chk.append(valu("v_accvgpr_read_b32", vWT, aST[ST_WT]))
    chk += late_srd
    T.raw(v0['end'], *chk)

    def epi_ops(sl):
        ops = []; k_ = 0; toks = []
        for tt in range(2):
            for n in range(3):
                pk = V(192 + (tt * 3 + n) * 4, 4)
                for hf in range(2):
                    tb_ = V(216 + 4 * (k_ % 3), 4); k_ += 1
                    a4 = Oacc(sl, 2 * tt + hf, n)
                    for i in range(4): ops.append(valu("v_accvgpr_read_b32", tb_[i], a4[i]))
                    for i in range(4): ops.append(valu("v_mul_f32", tb_[i], tb_[i], vR[n]))
                    for i in range(2): ops.append(valu("v_cvt_pk_bf16_f32", pk[2 * hf + i], tb_[2 * i], tb_[2 * i + 1]))
        return ops, toks
    def flagst(val):
        return [valu("v_mov_b32", vFD, val), buf_store("buffer_store_dword", vFD, vFA, rFL, 0, 0, "sc1")]
    def spin_code(name, load, test):
        spin.extend([label(f"L_spin{name}"), raw("s_sleep 2"),
                     raw("s_add_u32 s86, s86, 1"), raw("s_cmp_gt_u32 s86, 0x40000"), raw(f"s_cbranch_scc1 L_ret{name}"),
                     raw(load), raw("s_waitcnt vmcnt(0)")] + [raw(t) for t in test] +
                    [raw(f"s_cbranch_scc1 L_spin{name}"), raw(f"s_branch L_ret{name}")])
    spin = []
    a_ = Ins(f"buffer_atomic_add {vT3[1]}, {vT3[0]}, {rDB}, 0 offen sc1", 'vmem', (), vT3.set() | rDB.set(), needs=[zst.tok]); a_.tok = Tok('vm')
    T.chain([valu("v_accvgpr_read_b32", vT3[0], aST[ST_DA]), valu("v_mov_b32", vT3[1], 1), a_], qend + 2)
    ild = buf_load("buffer_load_dword", vT3[1], vT3[0], rDB, 0, 0, "sc1")
    kb3 = plan[unit_index('k', 3)]['base']
    T.chain([valu("v_accvgpr_read_b32", vT3[0], aST[ST_DA]), ild], kb3 + 1)
    T.raw(plan[unit_index('k', 6)]['base'] + 1,
          valu("v_readfirstlane_b32", sFL, vT3[1], needs=[ild.tok]), salu("s_lshl_b32", sT0, sWAVE, 4), salu("s_add_u32", sFL, sFL, sT0),
          salu("s_cmp_lt_u32", None, sFL, 16), raw("s_cbranch_scc1 L_spinI", 'branch'), label("L_retI"))
    spin_code("I", f"buffer_load_dword {vT3[1]}, {vT3[0]}, {rDB}, 0 offen sc1",
              [f"v_readfirstlane_b32 {sFL}, {vT3[1]}", "s_nop 4", f"s_cmp_lt_u32 {sFL}, 16"])
    for sl in range(4):
        cpos = ckpos[sl]; pb = bar(pub_ui[sl])
        pp = T.chain(flagst(sl + 1), pb + 1, hard_end=pb + 4)
        ld = buf_load("buffer_load_dword", vFP, vFG, rFL, 0, 0, "sc1")
        lp = T.put(max(cpos - cfg.cklead, min(pb + 45, cpos - 30), pp[-1] + 1), ld)
        ck = [valu("v_cmp_gt_u32", "vcc", sl + 1, vFP, needs=[ld.tok]),
              raw("s_cmp_lg_u64 vcc, 0", 'salu', rd=['vcc']),
              raw(f"s_cbranch_scc1 L_spin{sl}", 'branch'), label(f"L_ret{sl}")]
        if cfg.stamps: ck = st.stamp(f"ck{sl}a") + ck + st.stamp(f"ck{sl}b")
        T.raw(cpos, *ck)
        spin_code(str(sl), f"buffer_load_dword {vFP}, {vFG}, {rFL}, 0 offen sc1",
                  [f"v_cmp_gt_u32 vcc, {sl + 1}, {vFP}", "s_nop 4", "s_cmp_lg_u64 vcc, 0"])
        print(f"slice {sl}: epi {epi_win[sl]} publish {pb} flagload {lp} check {cpos} opbase {plan[U('o', 4 * sl)]['base']}", file=sys.stderr)
    for sl in range(4):
        ops, toks = epi_ops(sl)
        e0, e1 = epi_win[sl]
        step = (e1 - e0) // 6 + 1
        p_ = e0
        for kk in range(6):
            if sl: p_ = max(p_, st_g[sl - 1, kk]['ap'][0] + 2)
            ps = T.chain(ops[20 * kk:20 * kk + 20], p_, hard_end=min(e0 + (kk + 1) * step, e1))
            assert ps[-1] < st_g[sl, kk]['ap'][0] and ps[0] >= p_, (sl, kk, ps, st_g[sl, kk]['ap'])
            p_ = ps[-1] + 1
        for s2 in range(sl + 1, 4):
            if OBUF[s2] == OBUF[sl]: assert e1 < plan[U('v', 4 * s2)]['base'], "O acc reuse"
        assert e1 < plan[U('o', 4 * sl + 3)]['base'], "epilogue must finish before own-head unit"
        if sl: assert e0 >= plan[U('o', 4 * sl - 1)]['end']

    tail = []; A_ = tail.append
    tail += st.stamp('opend')
    vL16, vO, vLN, vPF, vLA = V(0), V(3), V(4), V(7), V(5)
    busy = {plan[-1]['slot'], plan[-2]['slot']}
    lslot = next(s_ for s_ in range(3) if s_ not in busy and s_ + 1 not in busy)
    LB = lslot * 16384
    tail += lane_id(vLN)
    A_(valu("v_lshlrev_b32", vL16, 4, vLN))
    A_(salu("s_lshl_b32", sT0, sWAVE, 2)); A_(salu("s_add_u32", sT0, sT0, sJH)); A_(salu("s_mul_i32", sT0, sT0, 12288))
    A_(salu("s_cmp_eq_u32", None, sWAVE, sJH)); A_(raw("s_cbranch_scc1 L_ownpart", 'branch'))
    k_ = 0
    for pc in range(4):
        for n in range(3):
            sl_ = pc * 3 + n
            if sl_ % 4 == 0: A_(salu("s_add_u32", sT1, sT0, sl_ * 1024))
            tb_ = V(16 + 12 * (k_ % 4), 12); k_ += 1
            nt2 = 2 if pc < 3 else 1
            for hf in range(nt2):
                for i in range(4): A_(valu("v_accvgpr_read_b32", tb_[4 * hf + i], Out(2 * pc + hf, n)[i]))
            for i in range(2 * nt2): A_(valu("v_cvt_pk_bf16_f32", tb_[8 + i], tb_[2 * i], tb_[2 * i + 1]))
            A_(buf_store("buffer_store_dwordx4" if nt2 == 2 else "buffer_store_dwordx2", tb_[8:8 + 2 * nt2], vL16, rPT, sT1, (sl_ % 4) * 1024, "sc1"))
    A_(raw("s_branch L_partdone", 'branch'))
    A_(label("L_ownpart")); A_(nop(7))
    for tl in range(21): A_(ds_write("ds_write_b128", vL16, aOUT[4 * tl:4 * tl + 4], LB + tl * 1024))
    A_(label("L_partdone"))
    A_(valu("v_and_b32", V(5), 15, vLN)); A_(valu("v_lshrrev_b32", V(6), 4, vLN))
    A_(valu("v_mul_u32_u24", vO, 896, V(5))); A_(valu("v_lshl_add_u32", vO, V(6), 3, vO))
    A_(valu("v_mov_b32", vFD, 5))
    A_(salu("s_lshl_b32", sT2, sIH, 8)); A_(valu("v_and_b32", vPF, 3, vLN)); A_(valu("v_lshlrev_b32", vPF, 10, vPF)); A_(valu("v_add_u32", vPF, sT2, vPF))
    A_(salu("s_mul_i32", sT0, sWAVE, 6144)); A_(valu("v_add_u32", vLA, sT0, vL16))
    A_(wait_all())
    A_(barrier())
    A_(buf_store("buffer_store_dword", vFD, vFA, rFL, 0, 0, "sc1"))
    tail += st.stamp('pub')
    own = []
    for n in range(3):
        for hf in range(2):
            r = ds_read("ds_read_b128", V(64 + 8 * n + 4 * hf, 4), vLA, LB + n * 1024 + hf * 3072); A_(r); own.append(r.tok)
    sS = [S(16 + k) for k in range(3)]
    A_(salu("s_mul_i32", sT0, sJH, 4 * 12288)); A_(salu("s_mul_i32", sT1, sWAVE, 3072)); A_(salu("s_add_u32", sT0, sT0, sT1))
    for k in range(3):
        A_(salu("s_add_u32", sT1, sJH, k + 1)); A_(salu("s_and_b32", sT1, sT1, 3)); A_(salu("s_mul_i32", sT1, sT1, 12288)); A_(salu("s_add_u32", sS[k], sT0, sT1))
    A_(salu("s_lshl_b32", sT2, sWAVE, 6))
    A_(salu("s_add_u32", sT3, sT2, 32)); A_(salu("s_mov_b32", sT0, "0x7ff00000"))
    A_(salu("s_cmp_eq_u32", None, sWAVE, 3)); A_(raw(f"s_cselect_b32 {sT3}, {sT0}, {sT3}", 'salu', wr=[sT3], rd=[sT0, sT3]))
    A_(label("L_poll"))
    A_(raw(f"buffer_load_dword v8, {vPF}, {rFL}, 0 offen sc1", 'other')); A_(raw("s_waitcnt vmcnt(0)"))
    A_(raw("v_cmp_gt_u32 vcc, 5, v8")); A_(raw("s_nop 4")); A_(raw("s_cmp_eq_u64 vcc, 0"))
    A_(raw("s_cbranch_scc1 L_pollskip")); A_(raw("s_sleep 1"))
    A_(raw("s_add_u32 s86, s86, 1")); A_(raw("s_cmp_gt_u32 s86, 0x40000")); A_(raw("s_cbranch_scc0 L_poll"))
    A_(label("L_pollskip"))
    tail += st.stamp('polled')
    lt = {}
    for n in range(3):
        for k in range(3):
            l_ = buf_load("buffer_load_dwordx4", V(16 + 12 * n + 4 * k, 4), vL16, rPT, sS[k], n * 1024, "sc1"); A_(l_); lt[n, k] = l_.tok
    A_(salu("s_mov_b32", sT0, "0xffff0000"))
    for n in range(3):
        acc = V(64 + 8 * n, 8)
        for k in range(3):
            src = V(16 + 12 * n + 4 * k, 4)
            for i in range(4):
                t0_, t1_ = V(96 + 2 * (i % 2)), V(97 + 2 * (i % 2))
                A_(valu("v_lshlrev_b32", t0_, 16, src[i], needs=[lt[n, k]])); A_(valu("v_and_b32", t1_, sT0, src[i]))
                A_(valu("v_add_f32", acc[2 * i], acc[2 * i], t0_, needs=own[2 * n:2 * n + 2])); A_(valu("v_add_f32", acc[2 * i + 1], acc[2 * i + 1], t1_))
        pk = V(100 + 4 * n, 4)
        for i in range(4): A_(valu("v_cvt_pk_bf16_f32", pk[i], acc[2 * i], acc[2 * i + 1]))
        if n: A_(valu("v_add_u32", vO, 16 * 896, vO))
        A_(buf_store("buffer_store_dwordx2", pk[0:2], vO, rOUT, sT2, 0))
        A_(buf_store("buffer_store_dwordx2", pk[2:4], vO, rOUT, sT3, 0))
    if cfg.stamps:
        tail += [wait_all()] + st.stamp('end') + st.flush(V(0, 4), 0)
    main = pro + T.flatten() + tail + [label("L_end"), raw("s_endpgm")]

    fb = []
    if cfg.fallback:
        F = fb.append
        F(label("L_fallback")); F(raw("s_nop 15")); F(wait_all())
        vKG = V(216); mx = V(217, 3); ta, tb_ = V(220), V(221)
        Sf = lambda kt, n: V(192 + (kt * 3 + n) * 4, 4)
        kf = lambda i: aX[4 * (i % 6):4 * (i % 6) + 4]
        F(valu("v_accvgpr_read_b32", vKG, aST[ST_KG]))
        def s_unit(cinit):
            ops = []
            for half in range(4):
                lds_ = []
                for q in range(4):
                    i = 4 * half + q; s_, kt = divmod(i, 2)
                    l_ = buf_load("buffer_load_dwordx4", kf(q), vKG, rK, sF1 if kt else sF0, s_ * 64); ops.append(l_); lds_.append(l_.tok)
                for q in range(4):
                    i = 4 * half + q; s_, kt = divmod(i, 2)
                    for n in range(3):
                        ops.append(mfma16(Sf(kt, n), kf(q), Qf(s_, n), Sf(kt, n) if s_ else cinit(n), needs=[lds_[q]]))
                ops.append(nop(7))
            return ops
        for n in range(3): F(valu("v_mov_b32", mx[n], "0xff800000"))
        F(salu("s_mov_b32", sF0, 0)); F(salu("s_mov_b32", sF1, 8192))
        F(label("L_fb_max"))
        fb += s_unit(lambda n: 0)
        for n in range(3):
            for kt in range(2):
                s4 = Sf(kt, n)
                F(valu("v_max3_f32", mx[n], mx[n], s4[0], s4[1])); F(valu("v_max3_f32", mx[n], mx[n], s4[2], s4[3]))
        F(salu("s_add_u32", sF0, sF0, 16384)); F(salu("s_add_u32", sF1, sF1, 16384))
        F(salu("s_cmp_lt_u32", None, sF0, 262144)); F(raw("s_cbranch_scc1 L_fb_max", 'branch'))
        for n in range(3): fb += max_ops([mx[n], mx[n], mx[n]], n, ta, tb_)
        for u in range(16):
            F(salu("s_mov_b32", sF0, u * 16384)); F(salu("s_mov_b32", sF1, u * 16384 + 8192))
            fb += s_unit(lambda n: vNEGM[4 * n:4 * n + 4])
            fb += softmax_ops(u, Sf, False)
            fb += ones(u, u == 0)
        slot = v0['slot']
        va_ = V(192, 4)
        for t in range(4):
            F(valu("v_accvgpr_read_b32", va_[t], aST[ST_VR + t])); F(valu("v_add_u32", va_[t], slot * 16384, va_[t]))
        mfs = pv_mf(0, 0, lambda i: kf(i % 4))
        for ks in range(4):
            for t in range(4):
                for hh in range(2):
                    r = ds_read("ds_read_b64_tr_b16", kf(t)[2 * hh:2 * hh + 2], va_[t], ks * 4096 + hh * 2048); F(r)
                    mfs[3 * (4 * ks + t)].needs.append(r.tok)
            fb += mfs[12 * ks:12 * ks + 12]
            F(nop(7))
        F(nop(7))
        for n in range(3): F(valu("v_accvgpr_read_b32", vT3[0] if n == 0 else (vT3[1] if n == 1 else V(192)), aL[4 * n]))
        F(wait_all()); F(nop(3))
        F(raw("s_branch L_fb_ret", 'branch'))
    for nm, a_, b_ in (("q", 0, qend), ("qk", qend, v0['base']), ("pv/op", v0['base'], end_pos)):
        print(f"overflow slots {nm}: {T.stats(a_, b_)}", file=sys.stderr)
    print("per-unit overflow:", " ".join(f"{u['kind']}{u['idx']}:{T.stats(u['base'], u['end'])}" for u in plan), file=sys.stderr)
    return main, spin, fb


HEADER = open("cdna_kernels/" + NAME + ".s.ref").read().split("; Override launch")[0]


def build(cfg, path):
    L = [HEADER.rstrip("\n")]
    L.append("; @launch grid=(256,1,1) block=(256,1,1) lds=163840")
    L.append('.amdgcn_target "amdgcn-amd-amdhsa--gfx950"')
    L.append(".text")
    main, spin, fb = kernel(cfg)
    L += render(main); L += render(spin); L += render(fb)
    for k_, v_ in STAMP_NAMES.items(): L.append(f"; STAMPS {k_} " + ",".join(v_))
    L.append(kd(KNAME))
    open(path, "w").write("\n".join(L) + "\n")


if __name__ == "__main__":
    import argparse
    ap = argparse.ArgumentParser()
    ap.add_argument("-o", default="cdna_kernels/" + NAME + ".s")
    ap.add_argument("--stamps", action="store_true")
    ap.add_argument("--opt", action="append", default=[])
    a = ap.parse_args()
    cfg = Cfg(); cfg.stamps = a.stamps
    for o_ in a.opt:
        k_, v_ = o_.split("=", 1)
        assert hasattr(cfg, k_), k_
        try: v_ = int(v_)
        except ValueError: pass
        setattr(cfg, k_, v_)
    build(cfg, a.o)
```

```python
import sys, struct, math
sys.path.insert(0, "dev")
from dsl import *

NAME = "standalone__mha_block_cached__near_ridge"
KNAME = NAME + "_kernel"
B, SQ, D, H, SK, DH = 16, 192, 448, 16, 512, 256
WS_OF = 0
WS_PT = 32 << 20
WS_FL = 60 << 20
WS_STAMP = 64 << 20

def f2u(x): return struct.unpack("<I", struct.pack("<f", x))[0]
QSCALE = f2u(math.log2(math.e) / 16.0)
L_LIMIT = f2u(2.0 ** 24)
OOB = "0x7ff00000"

sWAVE = S(3); sB, sH = S(4), S(5)
sT0, sT1, sT2, sT3 = S(6), S(7), S(12), S(13)
sKV, sW = S(8), S(9)
sM0K = S(10); sM0X = S(11); sC = S(14, 2)
P_X, P_K, P_V, P_WQ, P_WO, P_OUT, P_DBG, P_WS = [S(16 + 2 * i, 2) for i in range(8)]
rX, rWQ, rK, rV, rWO, rOF, rPT, rOUT, rST, rFL = [S(32 + 4 * i, 4) for i in range(10)]
sX = S(72); sOS = S(73); sOL = S(74); sJH = S(75); sIH = S(76); sOSB = S(77); sFL = S(78); sPS = S(79)
sSTAMP0 = 80
sF0, sF1 = S(84), S(85); sSPIN = S(86); sTO = S(87)
rDB = S(88, 4); rT = S(92, 4)
sOH = [S(96), S(97), S(98)]; sWH = [S(99), S(100), S(101), S(82)]
sO1, sO2 = S(83), S(16); sSRC = S(17)


class Cfg:
    stamps = False; dbg = ''
    kv_flags = "nt"; q_flags = ""; wo_flags = ""; wt_flags = ""
    nfr = 12
    kv0 = 8; d1 = 24; d2 = 18; d3 = 18; minlead = 110; kvprio = 60
    nreg = 4; wrlag = 130
    ga1 = 4; ga2 = 7; ga3 = 4
    porder = 'W0,X0|W1,X1,W2'
    epilen = 118; epilen3 = 100; stgap = 30; stgap3 = 0
    publag = 76; cklag = 200; cklead = 100; olead = 100; olead3 = 110; olmax = 500
    womax = 6; womaxlead = 900; wtgap = 150; wtpos = 4; wourg = 150
    ctouch = 1; fallback = 1; late0 = 2; kvwin = 0; kvwin0 = 13


STAMP_NAMES = {}
class Stamper:
    def __init__(self, on, dbg=''): self.on, self.n = on, 0; self.names = []; self.dbg = dbg
    def _w(self, op, name):
        r = S(sSTAMP0, 2); i = self.n; self.n += 1; self.names.append(name)
        assert self.n <= 64
        return [raw(f"{op} {r}", 'smem', wr=[r]), wait_all(vm=False),
                raw(f"v_writelane_b32 v255, {r[0]}, {i}", 'valu', wr=[V(255)], rd=[r[0]])]
    def start(self):
        return self._w("s_memrealtime", "rt0") + self._w("s_memtime", "t0") if self.on else []
    def stamp(self, name=""):
        return self._w("s_memtime", name) if self.on else []
    def flush(self, vt, kidx):
        if not self.on: return []
        ops = self._w("s_memrealtime", "rt1")
        ops.append(salu("s_lshl_b32", sT0, S(2), 2)); ops.append(salu("s_add_u32", sT0, sT0, sWAVE))
        ops.append(salu("s_lshl_b32", sT0, sT0, 8)); ops.append(salu("s_add_u32", sT0, sT0, kidx << 20))
        ops += lane_id(vt[0])
        ops.append(valu("v_lshlrev_b32", vt[0], 2, vt[0]))
        ops.append(buf_store("buffer_store_dword", V(255), vt[0], rST, sT0, 0))
        ops.append(wait_all())
        STAMP_NAMES[kidx] = self.names
        return ops


def lane_id(v):
    return [raw(f"v_mbcnt_lo_u32_b32 {v}, -1, 0", 'valu', wr=[v]), raw(f"v_mbcnt_hi_u32_b32 {v}, -1, {v}", 'valu', wr=[v], rd=[v])]


def srd(ops, r, ptr, off_lo=None, off_hi=0, size=0):
    if off_lo is None:
        ops.append(salu("s_mov_b32", r[0], ptr[0])); ops.append(salu("s_mov_b32", r[1], ptr[1]))
    else:
        ops.append(Ins(f"s_add_u32 {r[0]}, {ptr[0]}, {off_lo}\n    s_addc_u32 {r[1]}, {ptr[1]}, {off_hi}", 'salu',
                       r[0:2].set() | {('scc', 0)}, ptr.set() | rset(off_lo) | rset(off_hi)))
    ops.append(salu("s_mov_b32", r[2], size)); ops.append(salu("s_mov_b32", r[3], "0x20000"))


def kd(name, nv=512, acc=256):
    return f""".section .rodata,"a"
.p2align 6
.amdhsa_kernel {name}
  .amdhsa_next_free_vgpr {nv}
  .amdhsa_next_free_sgpr 102
  .amdhsa_accum_offset {acc}
  .amdhsa_group_segment_fixed_size 0
  .amdhsa_kernarg_size 64
  .amdhsa_user_sgpr_count 2
  .amdhsa_user_sgpr_kernarg_segment_ptr 1
  .amdhsa_system_sgpr_workgroup_id_x 1
.end_amdhsa_kernel
"""

WB = [0, 16384, 32768, 49152]
XB = [65536, 65536 + 24576]
vWR = V(192, 8); vXR = V(200, 2); vWD = V(202, 4); vXD = V(206, 4); vTMP = V(210, 18)
vNEGM = V(228, 12); vKR = V(240, 4); vKD = V(244, 4); vVD = V(248, 4); vOST = V(252); vT3 = V(253, 2)
vR = V(228, 3); vWOR = V(231); vFA = V(232); vFD = V(233); vFP = V(234); vFG = V(235); vWOR3 = V(236, 3)
aFR = A(96, 48); aX = A(144, 24); aXF = A(144, 36); aL = A(168, 12); aONE = A(180, 4); aST = A(184, 16)
aOUT = A(172, 84)
ST_VR, ST_WOD, ST_WOR, ST_FA, ST_KG, ST_FG, ST_DA, ST_KW, ST_WT = 0, 4, 8, 9, 11, 12, 13, 14, 15

def Qacc(t, n): return V((t * 3 + n) * 4, 4)
def Qf(s, n): return A((s * 3 + n) * 4, 4)
def SB(u): return 180 if u % 2 == 0 else 204
def Sreg(u, kt, n): return V(SB(u) + (kt * 3 + n) * 4, 4)
def Preg(u, n): return V((12 * u if u < 15 else 180) + 4 * n, 4)
OBUF = [200, 0, 48, 0]
def Oacc(sl, t, n): return A(OBUF[sl] + (t * 3 + n) * 4, 4)
def Out(nt, n): return aOUT[(nt * 3 + n) * 4:(nt * 3 + n) * 4 + 4]
BB = {(0, 0): A(144, 24), (0, 1): V(0, 24), (0, 2): V(24, 24), (1, 0): V(48, 24), (1, 1): V(72, 24), (1, 2): V(96, 24),
      (2, 0): V(120, 24), (2, 1): A(48, 24), (2, 2): A(72, 24), (3, 0): V(144, 24), (3, 1): V(168, 24), (3, 2): A(0, 24)}
PKR = V(192, 24)


def kernel(cfg):
    st = Stamper(cfg.stamps, cfg.dbg)
    NFR = cfg.nfr
    pro = [Ins(f".globl {KNAME}", 'dir'), Ins(".p2align 8", 'dir'), Ins(f".type {KNAME},@function", 'dir'), label(KNAME)]
    P = pro.append
    P(salu("s_cmp_ge_u32", None, S(2), 256)); P(raw("s_cbranch_scc1 L_end", 'branch'))
    P(raw("s_load_dwordx16 s[16:31], s[0:1], 0", 'smem', wr=[S(16, 16)]))
    pro += st.start()
    vl, vw, vg, vm, va, vb, vc, vd, r4, cc, ve, vti = [V(210 + i) for i in range(12)]
    P(valu("v_lshrrev_b32", vw, 6, V(0))); P(valu("v_and_b32", vl, 63, V(0)))
    P(valu("v_readfirstlane_b32", sWAVE, vw))
    P(valu("v_lshrrev_b32", vg, 4, vl)); P(valu("v_and_b32", vm, 15, vl)); P(valu("v_mov_b32", vti, V(0)))
    P(salu("s_and_b32", sT0, S(2), 7)); P(salu("s_lshr_b32", sT1, S(2), 3))
    P(salu("s_lshr_b32", sB, sT0, 2)); P(salu("s_lshl_b32", sB, sB, 3)); P(salu("s_lshr_b32", sT2, sT1, 2)); P(salu("s_add_u32", sB, sB, sT2))
    P(salu("s_and_b32", sJH, sT0, 3)); P(salu("s_and_b32", sIH, sT1, 3)); P(salu("s_lshl_b32", sH, sJH, 2)); P(salu("s_add_u32", sH, sH, sIH))
    P(salu("s_lshl_b32", sM0K, sWAVE, 12)); P(salu("s_mul_i32", sM0X, sWAVE, 6144))
    P(valu("v_lshrrev_b32", va, 5, vl))
    P(valu("v_and_b32", vb, 1, vw)); P(valu("v_lshlrev_b32", vb, 3, vb))
    P(valu("v_and_b32", vc, 31, vl))
    P(valu("v_lshl_add_u32", ve, vw, 3, va)); P(valu("v_lshlrev_b32", ve, 13, ve))
    for i in range(2):
        P(valu("v_lshl_add_u32", vd, va, 1, vb))
        if i: P(valu("v_add_u32", vd, 4, vd))
        P(valu("v_xor_b32", vd, vd, vc)); P(valu("v_lshl_add_u32", vWD[i], vd, 4, ve))
        if i: P(valu("v_add_u32", vWD[i], 2 * 8192 - 1024, vWD[i]))
        P(valu("v_add_u32", vWD[i + 2], 4 * 8192 - 2048, vWD[i]))
    P(valu("v_mul_u32_u24", ve, 48, vw)); P(valu("v_lshrrev_b32", vd, 3, vl)); P(valu("v_add_u32", ve, ve, vd)); P(valu("v_mul_u32_u24", ve, 896, ve))
    P(valu("v_and_b32", vd, 7, vl)); P(valu("v_xor_b32", vd, vd, vg))
    P(valu("v_lshl_add_u32", vXD[0], vd, 4, ve))
    P(valu("v_xor_b32", vd, 4, vd)); P(valu("v_lshl_add_u32", vXD[1], vd, 4, ve)); P(valu("v_add_u32", vXD[1], 8 * 896 - 1024, vXD[1]))
    P(valu("v_add_u32", vXD[2], 16 * 896 - 2048, vXD[0])); P(valu("v_add_u32", vXD[3], 16 * 896 - 2048, vXD[1]))
    P(salu("s_lshl_b32", sT1, sH, 9)); P(salu("s_mul_i32", sT2, sB, SQ * D * 2))
    P(wait_all(vm=False))
    srd(pro, rWQ, P_WQ, sT1, 0, 447 * 8192 + 512)
    srd(pro, rX, P_X, sT2, 0, SQ * D * 2)

    def tag(lst):
        cur = None
        for pre, m0, ld in lst:
            if pre: cur = pre[-1]
            ld.expect = [cur] + ([m0] if m0 is not None else [])
        return lst
    def dma_w(s):
        return tag([([salu("s_mov_b32", sW, s * 32 * 8192)] if i == 0 else [], salu("s_add_u32", "m0", sM0K, WB[s % 4]),
                     buf_load_lds(vWD[i], rWQ, sW, i * 1024, cfg.q_flags)) for i in range(4)])
    def dma_x(j):
        out = []
        for i in range(6):
            pre = [salu("s_mov_b32", sX, j * 128 + (32 * 896 if i else 0))] if i in (0, 4) else []
            out.append((pre, salu("s_add_u32", "m0", sM0X, XB[j % 2] + (4096 if i >= 4 else 0)),
                        buf_load_lds(vXD[i % 4], rX, sX, (i % 4) * 1024, cfg.q_flags)))
        return tag(out)
    def dma_kv(kv, slot):
        out = []
        for i in range(4):
            if kv < 16:
                pre = [salu("s_mov_b32", sKV, kv * 16384)] if i == 0 else []
                ld = buf_load_lds(vKD[i], rK, sKV, i * 1024, cfg.kv_flags)
            else:
                s_, kb = divmod(kv - 16, 4)
                pre = [salu("s_mov_b32", sKV, kb * 65536 + s_ * 128)] if i == 0 else []
                ld = buf_load_lds(vVD[i], rV, sKV, i * 1024, cfg.kv_flags)
            out.append((pre, salu("s_add_u32", "m0", sM0K, slot * 16384), ld))
        return tag(out)
    def dma_wo(sl, hh, slot):
        return tag([([salu("s_add_u32", sW, sWH[hh], sl * 64 * 896)] if i == 0 else [], salu("s_add_u32", "m0", sM0K, slot * 16384),
                     buf_load_lds(vKD[i], rWO, sW, i * 1024, cfg.wo_flags)) for i in range(4)])
    def emit_now(lst):
        last = None
        for pre, m0, ld in lst:
            pro.extend(pre)
            if m0.text != last: P(m0); last = m0.text
            P(ld)
        return [ld.tok for _, _, ld in lst]

    wtok, xtok = {}, {}
    pgroups = [g.split(',') if g else [] for g in cfg.porder.split('|')]
    def pemit(k):
        for t in pgroups[k]:
            if t[0] == 'W': wtok[int(t[1])] = emit_now(dma_w(int(t[1])))
            else: xtok[int(t[1])] = emit_now(dma_x(int(t[1])))
        pro.extend(st.stamp(f'p{k}'))
    pemit(0)
    if cfg.ctouch:
        P(raw(f"s_getpc_b64 {S(84, 2)}", 'salu', wr=[S(84, 2)]))
        P(salu("s_lshr_b32", sT0, S(2), 3)); P(salu("s_lshl_b32", sT0, sT0, 2)); P(salu("s_add_u32", sT0, sT0, sWAVE)); P(salu("s_lshl_b32", sT0, sT0, 9))
        P(valu("v_and_b32", vd, 3, vl)); P(valu("v_lshlrev_b32", vd, 7, vd)); P(valu("v_add_u32", vd, sT0, vd))
        cl_ = Ins(f"global_load_dword a255, {vd}, {S(84, 2)}", 'vmem', A(255).set(), vd.set() | S(84, 2).set()); cl_.tok = Tok('vm'); P(cl_)
    P(salu("s_lshl_b32", sT0, sB, 4)); P(salu("s_add_u32", sT0, sT0, sH)); P(salu("s_lshl_b32", sT1, sT0, 18))
    srd(pro, rK, P_K, sT1, 0, 262144); srd(pro, rV, P_V, sT1, 0, 262144)
    P(valu("v_lshlrev_b32", ve, 9, va)); P(valu("v_lshl_add_u32", ve, vw, 12, ve)); P(valu("v_add_u32", va, va, vb))
    for i in range(4):
        P(valu("v_add_u32", vd, 2 * i, va)); P(valu("v_xor_b32", vd, vd, vc)); P(valu("v_lshl_add_u32", vKD[i], vd, 4, ve))
    P(valu("v_lshrrev_b32", r4, 2, vm)); P(valu("v_and_b32", cc, 3, vm))
    P(valu("v_and_b32", va, 1, vg)); P(valu("v_lshl_add_u32", va, va, 2, r4)); P(valu("v_lshlrev_b32", va, 1, va))
    P(valu("v_lshrrev_b32", vb, 1, cc))
    P(valu("v_lshl_add_u32", vc, vg, 3, r4)); P(valu("v_lshlrev_b32", vc, 9, vc))
    P(valu("v_and_b32", vd, 1, cc)); P(valu("v_lshl_add_u32", vc, vd, 3, vc))
    P(valu("v_xor_b32", vd, vb, va)); P(valu("v_lshl_add_u32", vWR[0], vd, 4, vc))
    for tb in range(1, 8): P(valu("v_xor_b32", vWR[tb], 32 * tb, vWR[0]))
    P(valu("v_lshrrev_b32", vd, 1, vm)); P(valu("v_xor_b32", vd, vd, vg)); P(valu("v_lshlrev_b32", vd, 4, vd))
    P(valu("v_lshl_add_u32", vXR[0], vm, 7, vd)); P(valu("v_add_u32", vXR[0], sM0X, vXR[0])); P(valu("v_add_u32", vXR[0], XB[0], vXR[0]))
    P(valu("v_xor_b32", vXR[1], 64, vXR[0]))
    pemit(1)

    late = []; P = late.append
    P(salu("s_mov_b32", sC[0], hex(QSCALE))); P(salu("s_mov_b32", sC[1], hex(QSCALE)))
    P(salu("s_lshl_b32", sT0, sB, 12)); P(salu("s_add_u32", sT0, sT0, WS_FL)); srd(late, rFL, P_WS, sT0, 0, 4096)
    srd(late, rDB, P_DBG, None, 0, 256)
    P(salu("s_lshl_b32", sT0, sH, 8)); P(salu("s_lshl_b32", sT1, sB, 4))
    P(valu("v_mov_b32", vd, OOB)); P(valu("v_mov_b32", vc, sT0)); P(valu("v_mov_b32", va, sT1))
    P(valu("v_cmp_eq_u32", "vcc", 0, vti)); P(valu("v_cndmask_b32", vc, vd, vc, "vcc")); P(valu("v_cndmask_b32", va, vd, va, "vcc"))
    P(valu("v_accvgpr_write_b32", aST[ST_FA], vc)); P(valu("v_accvgpr_write_b32", aST[ST_DA], va))
    P(valu("v_mov_b32", ve, 0))
    zst = buf_store("buffer_store_dword", ve, vc, rFL, 0, 0, "sc1"); P(zst)
    P(salu("s_lshl_b32", sT0, sJH, 10)); P(valu("v_and_b32", va, 3, vl)); P(valu("v_lshlrev_b32", va, 8, va)); P(valu("v_add_u32", va, sT0, va))
    P(valu("v_accvgpr_write_b32", aST[ST_FG], va))
    P(valu("v_lshlrev_b32", va, 4, vl)); P(salu("s_mul_i32", sT0, sWAVE, 128 * 3072)); P(valu("v_add_u32", vOST, sT0, va))
    P(valu("v_add_u32", va, sM0K, va)); P(valu("v_accvgpr_write_b32", aST[ST_KW], va))
    P(valu("v_lshlrev_b32", vd, 1, vg)); P(valu("v_and_b32", va, 7, vl)); P(valu("v_xor_b32", vd, vd, va)); P(valu("v_lshlrev_b32", vd, 4, vd))
    P(valu("v_lshrrev_b32", va, 3, vl)); P(valu("v_lshl_add_u32", va, vw, 5, va)); P(valu("v_lshl_add_u32", vVD[0], va, 9, vd))
    for i in range(1, 4): P(valu("v_add_u32", vVD[i], i * (4096 - 1024), vVD[0]))
    P(valu("v_and_b32", va, 1, vg)); P(valu("v_lshlrev_b32", va, 1, va)); P(valu("v_lshrrev_b32", vd, 1, vg)); P(valu("v_or_b32", va, va, vd))
    P(valu("v_xor_b32", vd, va, vm)); P(valu("v_lshlrev_b32", vd, 4, vd)); P(valu("v_lshl_add_u32", vKR[0], vm, 9, vd))
    for sb in range(1, 4): P(valu("v_xor_b32", vKR[sb], 64 * sb, vKR[0]))
    P(valu("v_lshlrev_b32", vd, 4, va)); P(valu("v_lshl_add_u32", vd, vm, 9, vd)); P(valu("v_accvgpr_write_b32", aST[ST_KG], vd))
    P(valu("v_lshrrev_b32", va, 1, r4)); P(valu("v_lshl_add_u32", va, vg, 1, va)); P(valu("v_and_b32", va, 3, va)); P(valu("v_lshlrev_b32", va, 1, va))
    P(valu("v_lshl_add_u32", ve, vg, 2, r4))
    P(valu("v_lshlrev_b32", vc, 7, ve)); P(valu("v_and_b32", vd, 1, cc)); P(valu("v_lshl_add_u32", vc, vd, 3, vc))
    P(valu("v_xor_b32", vd, vb, va)); P(valu("v_lshl_add_u32", vc, vd, 4, vc))
    for t in range(4):
        P(valu("v_xor_b32", vd, 32 * t, vc)); P(valu("v_accvgpr_write_b32", aST[ST_VR + t], vd))
    P(valu("v_mul_u32_u24", vd, 224, ve)); P(valu("v_lshl_add_u32", vd, cc, 3, vd)); P(valu("v_accvgpr_write_b32", aST[ST_WOR], vd))
    P(salu("s_mov_b32", sT0, 4682)); P(valu("v_mov_b32", ve, OOB))
    for i in range(4):
        P(valu("v_lshl_add_u32", va, vw, 8, vl))
        if i: P(valu("v_add_u32", va, 64 * i, va))
        P(valu("v_mul_u32_u24", vc, sT0, va)); P(valu("v_lshrrev_b32", vc, 16, vc))
        P(valu("v_mul_u32_u24", vc, 896 - 224, vc)); P(valu("v_lshl_add_u32", vc, va, 4, vc))
        if i: P(valu("v_subrev_u32", vc, i * 1024, vc))
        P(valu("v_cmp_gt_u32", "vcc", 896, va)); P(valu("v_cndmask_b32", vc, ve, vc, "vcc"))
        P(valu("v_accvgpr_write_b32", aST[ST_WOD + i], vc))
    P(salu("s_lshr_b32", sT0, S(2), 6)); P(salu("s_lshl_b32", sT0, sT0, 8)); P(salu("s_lshr_b32", sT1, S(2), 3)); P(salu("s_and_b32", sT1, sT1, 7))
    P(salu("s_lshl_b32", sT1, sT1, 3)); P(salu("s_add_u32", sT0, sT0, sT1)); P(salu("s_lshl_b32", sT1, sWAVE, 1)); P(salu("s_add_u32", sT0, sT0, sT1))
    P(salu("s_mul_i32", sT0, sT0, 896))
    P(valu("v_lshlrev_b32", va, 7, vl)); P(valu("v_add_u32", va, sT0, va))
    P(valu("v_cmp_gt_u32", "vcc", 14, vl)); P(valu("v_cndmask_b32", va, ve, va, "vcc"))
    P(valu("v_accvgpr_write_b32", aST[ST_WT], va))
    P(valu("v_mov_b32", vd, "0x3f803f80"))
    for i in range(4): P(valu("v_accvgpr_write_b32", aONE[i], vd))
    P(salu("s_mul_i32", sT0, sB, 4 * 128 * 3072)); P(salu("s_mul_i32", sT1, sJH, 32 * 3072)); P(salu("s_add_u32", sT0, sT0, sT1))
    srd(late, rOF, P_WS, sT0, 0, 3 * 128 * 3072 + 32 * 3072)
    P(salu("s_mul_i32", sOSB, sIH, 8 * 3072))
    P(salu("s_mul_i32", sT0, sJH, 1024 * 896)); srd(late, rT, P_WO, sT0, 0, 1024 * 896)
    P(salu("s_mul_i32", sT1, sIH, 224)); P(salu("s_add_u32", sT0, sT0, sT1))
    srd(late, rWO, P_WO, sT0, 0, 1023 * 896 + 224)
    P(salu("s_lshl_b32", sT0, sB, 2)); P(salu("s_add_u32", sT0, sT0, sIH)); P(salu("s_mul_i32", sT0, sT0, 16 * 12288)); P(salu("s_add_u32", sT0, sT0, WS_PT))
    srd(late, rPT, P_WS, sT0, 0, 16 * 12288)
    P(salu("s_mul_i32", sT0, sB, 192 * 896)); P(salu("s_mul_i32", sT2, sJH, 48 * 896)); P(salu("s_add_u32", sT0, sT0, sT2)); P(salu("s_add_u32", sT0, sT0, sT1))
    srd(late, rOUT, P_OUT, sT0, 0, 47 * 896 + 224)
    if cfg.stamps: srd(late, rST, P_WS, WS_STAMP, 0, 128 << 20)
    P(salu("s_mov_b32", sSPIN, 0))
    for hh in range(4):
        P(salu("s_add_u32", sT0, sIH, hh + 1)); P(salu("s_and_b32", sT0, sT0, 3))
        if hh < 3: P(salu("s_mul_i32", sOH[hh], sT0, 8 * 3072))
        P(salu("s_mul_i32", sWH[hh], sT0, 256 * 896))
    P(salu("s_lshl_b32", sT0, sWAVE, 2)); P(salu("s_add_u32", sT0, sT0, sJH)); P(salu("s_mul_i32", sPS, sT0, 12288))
    P(salu("s_mul_i32", sT0, sJH, 4 * 12288)); P(salu("s_mul_i32", sT1, sWAVE, 3072)); P(salu("s_add_u32", sSRC, sT0, sT1))
    P(salu("s_lshl_b32", sO1, sWAVE, 6)); P(salu("s_add_u32", sT0, sWAVE, 1)); P(salu("s_lshr_b32", sT0, sT0, 2)); P(salu("s_lshl_b32", sT0, sT0, 30))
    P(salu("s_add_u32", sO2, sO1, 32)); P(salu("s_add_u32", sO2, sO2, sT0))

    T = Timeline()
    def fr(f): return aFR[(f % NFR) * 4:(f % NFR) * 4 + 4]
    plan = []
    fctr = [0]
    def add_unit(kind, idx, nf, mk, pre_extra=(), post_extra=()):
        for e in pre_extra: T.add(e)
        base = len(T.m); f0 = fctr[0]; fctr[0] += nf
        mf = mk(f0)
        for m in mf: T.add(m)
        for e in post_extra: T.add(e)
        plan.append(dict(kind=kind, idx=idx, base=base, mf=mf, nf=nf, f0=f0, end=len(T.m)))
    def ones(u, first=False):
        return [mfma16(aL[4 * n:4 * n + 4], aONE, Preg(u, n), 0 if first else aL[4 * n:4 * n + 4]) for n in range(3)]
    for s in range(14):
        add_unit('q', s, 16, lambda f0: [mfma16(Qacc(t, n), fr(f0 + t), aXF[(s % 3) * 12 + 4 * n:(s % 3) * 12 + 4 * n + 4], Qacc(t, n) if s else 0)
                                         for t in range(16) for n in range(3)])
    def conv_ops():
        conv = []; pend = None
        for tp in range(8):
            for n in range(3):
                a4, b4 = Qacc(2 * tp, n), Qacc(2 * tp + 1, n)
                tq = vTMP[4 * ((tp * 3 + n) % 4):4 * ((tp * 3 + n) % 4) + 4]
                for r in (a4, b4):
                    conv.append(valu("v_pk_mul_f32", r[0:2], r[0:2], sC)); conv.append(valu("v_pk_mul_f32", r[2:4], r[2:4], sC))
                conv.append(valu("v_cvt_pk_bf16_f32", tq[0], a4[0], a4[1])); conv.append(valu("v_cvt_pk_bf16_f32", tq[2], b4[0], b4[1]))
                conv.append(valu("v_cvt_pk_bf16_f32", tq[1], a4[2], a4[3])); conv.append(valu("v_cvt_pk_bf16_f32", tq[3], b4[2], b4[3]))
                if pend: conv += pend
                qf = Qf(tp, n)
                pend = [valu("v_permlane16_swap_b32", tq[0], tq[2]), valu("v_permlane16_swap_b32", tq[1], tq[3])] + \
                       [valu("v_accvgpr_write_b32", qf[k_], tq[k_]) for k_ in range(4)]
        conv += pend
        groups = []; cur = []; c = 0
        for o in conv:
            cur.append(o); c += vcost(o)
            if c >= 4: groups.append(cur); cur = []; c = 0
        if cur: groups.append(cur)
        return groups
    qend = len(T.m)
    if cfg.stamps: T.raw(qend, *st.stamp('conv0'))
    for g_ in conv_ops(): T.add(g_)
    if cfg.stamps: T.raw(len(T.m), *st.stamp('conv1'))
    for u in range(16):
        add_unit('k', u, 16, lambda f0: [mfma16(Sreg(u, kt, n), fr(f0 + 2 * s + kt), Qf(s, n),
                                                Sreg(u, kt, n) if s else (0 if u < 2 else vNEGM[4 * n:4 * n + 4]))
                                         for s in range(8) for kt in range(2) for n in range(3)],
                 pre_extra=ones(u - 2, u == 2) if u >= 2 else ())
    def pv_mf(sl, kb, frf):
        return [mfma16(Oacc(sl, t, n), frf(4 * ks + t), Preg(4 * kb + ks, n), Oacc(sl, t, n) if (kb or ks) else 0)
                for ks in range(4) for t in range(4) for n in range(3)]
    def add_v(i):
        sl, kb = divmod(i, 4)
        first = i == 0
        add_unit('v', i, 16, lambda f0: pv_mf(sl, kb, lambda i_: fr(f0 + i_)),
                 pre_extra=ones(14) if first else (), post_extra=ones(15) if first else ())
    opn = [0]
    def add_o(sl, hh):
        first = opn[0] == 0; opn[0] += 1
        bb = PKR if hh == 3 else BB[sl, hh]
        add_unit('o', 4 * sl + hh, 14, lambda f0: [mfma16(Out(nt, n), fr(f0 + 7 * tt + nt), bb[12 * tt + 4 * n:12 * tt + 4 * n + 4],
                                                          Out(nt, n) if (tt or not first) else 0)
                                                   for tt in range(2) for nt in range(7) for n in range(3)])
    for i in range(7): add_v(i)
    add_o(0, 3)
    for i in range(7, 11): add_v(i)
    add_o(1, 3)
    for i in range(11, 15): add_v(i)
    add_o(2, 3); add_v(15)
    for hh in range(3): add_o(0, hh)
    add_o(3, 3)
    for sl in (1, 2):
        for hh in range(3): add_o(sl, hh)
    FORD = [(hh, tt, nt) for pc in range(4) for hh in range(3) for tt in range(2) for nt in range(2 * pc, min(2 * pc + 2, 7))]
    add_unit('f', 0, 42, lambda f0: [mfma16(Out(nt, n), fr(f0 + i), BB[3, hh][12 * tt + 4 * n:12 * tt + 4 * n + 4], Out(nt, n))
                                     for i, (hh, tt, nt) in enumerate(FORD) for n in range(3)])
    end_pos = len(T.m)
    NU = len(plan)
    def U(kind, idx): return next(i for i, u in enumerate(plan) if u['kind'] == kind and u['idx'] == idx)
    def UO(sl, hh): return NU - 1 if (sl == 3 and hh < 3) else U('o', 4 * sl + hh)

    for ui, un in enumerate(plan):
        nf = un['nf']; base = un['base']
        un['rlast'] = base + 3 * (nf - 1) - 3 * (NFR - 1) + 2
        un['bar'] = 0 if ui == 0 else plan[ui - 1]['rlast'] + 8
        un['rfirst'] = un['bar'] + 1 if ui else 0
        un['slots'] = {}
    bar = lambda ui: plan[ui]['bar']
    def release_pos(ui):
        if plan[ui]['kind'] == 'v' and plan[ui]['idx'] == 0 and cfg.fallback: return plan[ui + 2]['bar']
        return plan[ui + 1]['bar'] if ui + 1 < NU else end_pos + 100

    dma_busy = set()
    def put_dma(item, p):
        pre, m0, ld = item
        p = max(p, 1)
        while (p in dma_busy) or (p - 1 in dma_busy) or not T.free(p, ld) or not T.free(p - 1, m0): p += 1
        dma_busy.add(p); dma_busy.add(p - 1)
        for x in pre: T.put(p - 1, x)
        T.put(p - 1, m0); T.put(p, ld)
        return p

    for ui, un in enumerate(plan):
        un['barins'] = barrier(needs=[])
        T.head(un['bar'], un['barins']); T.gap(un['bar'])['ns'] += 1
        if cfg.stamps and (ui % 2 == 0 or ui <= 4 or ui == NU - 1): T.gap(un['bar'])['head'] += st.stamp(f"{un['kind']}{un['idx']}")

    v0 = plan[U('v', 0)]
    free_at = {7: 0, 8: 0, 9: 0, 2: bar(11), 6: bar(11), 3: bar(12), 0: bar(13), 4: bar(13), 5: bar(13), 1: bar(14)}
    regk = {3 + k_: (16 * k_ if k_ < 6 else 200 + 16 * (k_ - 6)) for k_ in range(cfg.nreg)}
    pvstart = plan[U('v', 4)]['base']
    epi_win = {}; pub_ui = {}; ckpos = {}; st_win = {}
    for sl in range(4):
        e0 = plan[U('v', 4 * sl + 3)]['end'] + 4
        e1 = e0 + (cfg.epilen if sl < 3 else cfg.epilen3)
        epi_win[sl] = (e0, e1)
        sg = cfg.stgap if sl < 3 else cfg.stgap3
        step = (e1 - e0) // 6 + 1
        st_win[sl] = [max(e0 + (k_ + 1) * step + 2, e0 + k_ * sg) for k_ in range(6)]
        se = st_win[sl][-1] + 12
        pub_ui[sl] = next(i_ for i_ in range(NU) if bar(i_) >= se + cfg.publag)
        ob = plan[UO(sl, 0)]['base']
        ckpos[sl] = min(bar(pub_ui[sl]) + cfg.cklag, ob - (cfg.olead if sl < 3 else cfg.olead3))
        assert ckpos[sl] > bar(pub_ui[sl]) + 8
    streams = {k_: [] for k_ in ('kv', 'w', 'x', 'ol', 't', 'wr', 'st')}
    done_pro = set(t for g in pgroups for t in g)
    for s_ in range(14):
        if f"W{s_}" not in done_pro:
            streams['w'].append(dict(kind='W', id=s_, n=4, rel=bar(s_ - 3) + 2 if s_ >= 4 else 1, need=bar(s_)))
    for j_ in range(7):
        if f"X{j_}" not in done_pro:
            streams['x'].append(dict(kind='X', id=j_, n=6, rel=bar(2 * j_ - 3) + 2 if j_ >= 2 else 1, need=bar(2 * j_)))
    for kv in range(32):
        ui = U('k', kv) if kv < 16 else U('v', kv - 16)
        streams['kv'].append(dict(kind='KV', id=kv, ui=ui, n=4, rel=cfg.kv0, need=bar(ui), slot=kv not in regk))
    wt0 = plan[U('k', cfg.wtpos)]['base'] + 6
    for sl in range(4):
        streams['t'].append(dict(kind='WT', id=sl, n=1, rel=wt0 + 10 * sl, need=wt0 + 10 * sl + 10))
    worder = sorted([(bar(UO(sl, hh)), sl, hh) for sl in range(4) for hh in range(4)])
    for b_, sl, hh in worder:
        rel = max(b_ - cfg.womaxlead, wt0 + 40 + cfg.wtgap)
        streams['w'].append(dict(kind='WO', id=(sl, hh), ui=UO(sl, hh), n=4, rel=rel, need=b_, slot=True))
    for sl in range(4):
        for hh in range(3):
            i_ = UO(sl, hh); bb = BB[sl, hh]
            rel = ckpos[sl] + 1
            if bb.k == 'a' and bb.i < 48: rel = max(rel, epi_win[3][1] + 2)
            elif bb.k == 'a' and bb.i < 96: rel = max(rel, epi_win[2][1] + 2)
            if bb.k == 'v': rel = max(rel, plan[U('v', 12 + (bb.i + 23) // 48)]['end'] + 1)
            need = plan[i_]['base'] + (12 * hh if sl == 3 else 0)
            rel = max(rel, need - cfg.olmax)
            streams['ol'].append(dict(kind='OL', id=(sl, hh), ui=i_, n=6, rel=rel, need=need))
    for sl in range(4):
        for k_ in range(6): streams['st'].append(dict(kind='ST', id=(sl, k_), n=1, rel=st_win[sl][k_], need=st_win[sl][k_] + 14))
    sched = []
    nxt_any = 1; nxt_hbm = cfg.kv0; kv_end = None; k15_done = None
    wo_res = []
    p = 1
    while any(streams.values()):
        assert p < end_pos + 50, [(k_, v_[0]) for k_, v_ in streams.items() if v_]
        fs = sorted(s_ for s_ in free_at if free_at[s_] + 2 <= p)
        if streams['wr'] and streams['wr'][0]['rel'] <= p and fs:
            g = streams['wr'].pop(0); g['slot'] = fs[0]; g['pos'] = p
            plan[g['ui']]['slots'][0] = fs[0]; free_at[fs[0]] = release_pos(g['ui']); sched.append(g); fs = fs[1:]
            if streams['wr']: streams['wr'][0]['rel'] = max(streams['wr'][0]['rel'], p + 12)
        if p >= nxt_any:
            cands = []
            for k_, q in streams.items():
                if not q or k_ == 'wr': continue
                g = q[0]; i_ = len(g.setdefault('pos', []))
                if p < g['rel']: continue
                if g['kind'] == 'WO' and (k15_done is None or p < k15_done + 8): continue
                dl = g['need'] - (cfg.minlead - 12 * i_ if k_ == 'kv' else 0)
                if g.get('slot') is True:
                    resv = len([w for w in streams['wr'] if w['rel'] <= p + 30])
                    if len(fs) <= resv and not (k_ == 'kv' and p >= dl): continue
                    if not fs: continue
                    pend_low = len([k2 for k2, rk2 in regk.items() if rk2 < 96 and not any(x['kind'] == 'WR' and x['id'] == k2 for x in sched)])
                    if pend_low and g['id'] not in (0, 1, 2) and len([s2 for s2 in free_at if free_at[s2] <= bar(14)]) <= pend_low: continue
                    if g['kind'] == 'WO' and streams['kv'] and p < g['need'] - cfg.wourg:
                        if len(fs) < 2 or len([r_ for r_ in wo_res if r_ > p]) >= cfg.womax: continue
                if k_ == 'kv' and p < nxt_hbm and p < dl: continue
                cands.append((dl if k_ != 'kv' else min(dl, p + cfg.kvprio), k_))
            if cands:
                _, k_ = min(cands); g = streams[k_][0]
                if g.get('slot') is True:
                    g['slot'] = fs[0]; free_at[fs[0]] = release_pos(g['ui'])
                    plan[g['ui']]['slots'][g['id'][1] if (g['kind'] == 'WO' and g['ui'] == NU - 1) else 0] = fs[0]
                    if g['kind'] == 'WO': wo_res.append(release_pos(g['ui']))
                g['pos'].append(p)
                ga = 2 if p < 40 else (cfg.ga1 if p < bar(12) else (cfg.ga2 if (kv_end is None or p < kv_end + 70) else cfg.ga3))
                nxt_any = p + ga
                if k_ == 'kv': nxt_hbm = max(min(nxt_hbm, p), p - 8) + (cfg.d1 if p < bar(11) else (cfg.d2 if p < pvstart else cfg.d3))
                if len(g['pos']) == g['n']:
                    streams[k_].pop(0); sched.append(g)
                    if g['kind'] == 'KV':
                        if g['id'] == 15: k15_done = p
                        if g['id'] == 31: kv_end = p
                        if g['id'] in regk:
                            rk_ = regk[g['id']]
                            streams['wr'].append(dict(kind='WR', id=g['id'], ui=g['ui'], rel=min(p + cfg.wrlag, qend - 30 + rk_) if rk_ < 96 else bar(g['ui']) - 75))
        p += 1

    region = {'kv': 0, 'wo': 0}
    use_end = {}
    for ui, un in enumerate(plan):
        base, kind, idx, nf = un['base'], un['kind'], un['idx'], un['nf']
        r0, r1 = un['rfirst'], max(un['rlast'], un['rfirst'])
        toks = []; xtk = []
        if kind == 'q':
            if idx % 2 == 0:
                xb = XB[(idx // 2) % 2] - XB[0]
                for par in range(2):
                    for n in range(3):
                        g_ = (idx + par) % 3
                        r = ds_read("ds_read_b128", aXF[g_ * 12 + 4 * n:g_ * 12 + 4 * n + 4], vXR[par], xb + n * 2048)
                        if ui: T.place(r, r0 + 2 + 3 * (3 * par + n), r0 + 24)
                        elif par == 0: T.put(0, r)
                        else: T.place(r, 3 + 3 * n, 12)
                        plan[ui + par]['mf'][n].needs.append(r.tok); xtk.append(r.tok)
        elif kind == 'f':
            adj = [valu("v_add_u32", vWOR3[hh], hex(((un['slots'][hh] * 16384) - region['wo'] * 65536) & 0xffffffff), vWOR) for hh in range(3)]
            T.chain(adj, plan[ui - 1]['rfirst'] + 1, hard_end=r0 - 1)
        else:
            slot = un['slots'][0]; regn = slot // 4; sbase = (slot % 4) * 16384
            adj = []
            if kind == 'v' and idx == 0:
                adj += [valu("v_accvgpr_read_b32", vKR[t], aST[ST_VR + t]) for t in range(4)]; region['kv'] = 0
            key = 'wo' if kind == 'o' else 'kv'
            d = regn - region[key]
            if d:
                lit = hex((d * 65536) & 0xffffffff)
                adj += [valu("v_add_u32", a_, lit, a_) for a_ in ([vWOR] if kind == 'o' else [vKR[i] for i in range(4)])]
                region[key] = regn
            if adj: T.chain(adj, plan[ui - 1]['rlast_actual'] + 1, hard_end=r0 - 1)
        lastp = r0
        for i in range(nf):
            f = un['f0'] + i
            pos = r0 + int(round(i * (r1 - r0) / (nf - 1.0)))
            if ui == 0: pos = max(0, base + 3 * i - 24)
            use_end[f] = base + 3 * i + 3
            if f >= NFR: pos = max(pos, use_end[f - NFR])
            if kind == 'q':
                a_, tb = divmod(i, 8)
                rs = [ds_read("ds_read_b64_tr_b16", fr(f)[2 * hh:2 * hh + 2], vWR[tb], WB[idx % 4] + a_ * 256 + hh * 2048) for hh in range(2)]
            elif kind == 'k':
                s_, kt = divmod(i, 2); a_, sb = divmod(s_, 4)
                rs = [ds_read("ds_read_b128", fr(f), vKR[sb], sbase + kt * 8192 + a_ * 256)]
            elif kind == 'v':
                ks, t = divmod(i, 4)
                rs = [ds_read("ds_read_b64_tr_b16", fr(f)[2 * hh:2 * hh + 2], vKR[t], sbase + ks * 4096 + hh * 2048) for hh in range(2)]
            elif kind == 'o':
                tt, nt = divmod(i, 7)
                rs = [ds_read("ds_read_b64_tr_b16", fr(f)[2 * hh:2 * hh + 2], vWOR, sbase + tt * 7168 + hh * 3584 + nt * 32) for hh in range(2)]
            else:
                h3, tt, nt = FORD[i]
                rs = [ds_read("ds_read_b64_tr_b16", fr(f)[2 * hh:2 * hh + 2], vWOR3[h3], tt * 7168 + hh * 3584 + nt * 32) for hh in range(2)]
            for r in rs:
                if ui == 0 and pos == 0: lastp = T.put(0, r)
                else: lastp = T.place(r, max(pos, lastp), max(pos, lastp) + 2)
                toks.append(r.tok)
            un.setdefault('ftok', []).append([r.tok for r in rs])
            un.setdefault('fpos', []).append(lastp)
        un['rlast_actual'] = lastp
        assert ui + 1 >= NU or lastp < plan[ui + 1]['bar'], (ui, lastp, plan[ui + 1]['bar'])
        if ui + 1 < NU: plan[ui + 1]['barins'].needs += toks[-2:] + xtk
        for i in range(0, nf, 2):
            nd = list(un['ftok'][i])
            if i + 1 < nf and un['fpos'][i + 1] < base + 3 * i - 5: nd += un['ftok'][i + 1]
            elif i + 1 < nf: un['mf'][3 * (i + 1)].needs += un['ftok'][i + 1]
            if ui == 0 and i == 0: un['mf'][0].needs += nd
            else: T.head(base + 3 * i, waitpt(nd), count=True)
            un['mf'][3 * i].needs += un['ftok'][i]

    rtok = {}; last_k_pos = 0; first_wo = 10 ** 9; st_g = {}; wt_pos = []
    ev = []
    for g in sched:
        k_ = g['kind']
        if k_ == 'WR': continue
        if k_ == 'W': items = dma_w(g['id']); wtok[g['id']] = [it[2].tok for it in items]
        elif k_ == 'X': items = dma_x(g['id']); xtok[g['id']] = [it[2].tok for it in items]
        elif k_ == 'WO': items = dma_wo(g['id'][0], g['id'][1], g['slot'])
        elif k_ == 'KV' and g['id'] not in regk: items = dma_kv(g['id'], g['slot'])
        elif k_ == 'KV':
            kv = g['id']
            items = tag([([salu("s_mov_b32", sKV, kv * 16384)] if i_ == 0 else [], None,
                          buf_load("buffer_load_dwordx4", A(regk[kv] + 4 * i_, 4), vKD[i_], rK, sKV, i_ * 1024, cfg.kv_flags)) for i_ in range(4)])
            rtok[kv] = [it[2].tok for it in items]
        elif k_ == 'WT':
            items = tag([([salu("s_mov_b32", sTO, g['id'] * 64 * 896)], None,
                          buf_load("buffer_load_dword", A(248 + g['id']), vT3[0], rT, sTO, 0, cfg.wt_flags))])
        elif k_ == 'ST':
            sl, kk = g['id']; tt, n = divmod(kk, 3)
            items = tag([([salu("s_add_u32", sOS, sOSB, (2 * sl + tt) * 3072)], None,
                          buf_store("buffer_store_dwordx4", PKR[kk * 4:kk * 4 + 4], vOST, rOF, sOS, n * 1024, "sc1"))])
            st_g[sl, kk] = g
            if kk == 5: plan[pub_ui[sl]]['barins'].needs.append(items[0][2].tok)
        elif k_ == 'OL':
            sl, hh = g['id']; un = plan[g['ui']]; bb = BB[sl, hh]; items = []
            for tt in range(2):
                for n in range(3):
                    l_ = buf_load("buffer_load_dwordx4", bb[12 * tt + 4 * n:12 * tt + 4 * n + 4], vOST, rOF, sOL, n * 1024, "sc1")
                    mi = 21 * tt + n if sl < 3 else 3 * FORD.index((hh, tt, 0)) + n
                    un['mf'][mi].needs.append(l_.tok)
                    items.append(([salu("s_add_u32", sOL, sOH[hh], (2 * sl + tt) * 3072)] if n == 0 else [], None, l_))
            tag(items)
        g['ap'] = []
        for it, p in zip(items, g['pos']): ev.append((p, it, g))
        if k_ in ('KV', 'WO') and not (k_ == 'KV' and g['id'] in regk): plan[g['ui']]['barins'].needs += [it[2].tok for it in items]
    ev.sort(key=lambda e: e[0])
    if cfg.kvwin:
        kvl = [(p, it[2]) for p, it, g in ev if g['kind'] == 'KV']
        for k_ in range(cfg.kvwin, len(kvl)):
            if kvl[k_][0] >= bar(cfg.kvwin0): kvl[k_][1].needs.append(kvl[k_ - cfg.kvwin][1].tok)
    lastp = 0
    for p, it, g in ev:
        p = max(p, lastp + 1)
        if it[1] is not None: p = put_dma(it, p)
        else:
            while not T.free(p, it[2]): p += 1
            for x in it[0]: T.put(p, x)
            T.put(p, it[2])
        lastp = p; g['ap'].append(p)
    for g in sched:
        if g['kind'] in ('W', 'X', 'KV', 'WO', 'OL', 'ST'):
            assert g['ap'][-1] < g['need'], ("too late", g)
            if g['kind'] == 'KV' and g['id'] == 15: last_k_pos = g['ap'][-1]
            if g['kind'] == 'WO': first_wo = min(first_wo, g['ap'][0])
        if g['kind'] == 'WT': wt_pos.append(g['ap'][0])
    print("leads:", " ".join(f"{g['kind']}{g['id']}:{g['need'] - g['ap'][-1]}".replace(" ", "") for g in sched if g['kind'] in ('W', 'X', 'KV', 'WO', 'OL')), file=sys.stderr)
    for s_ in range(14):
        plan[s_]['barins'].needs += wtok[s_] + (xtok[s_ // 2] if s_ % 2 == 0 else [])
    lp_ = T.chain(late, cfg.late0)
    print(f"late setup ends at {lp_[-1]}", file=sys.stderr)
    assert lp_[-1] < bar(9)
    for g in sched:
        if g['kind'] != 'WR': continue
        kv = g['id']; un = plan[g['ui']]; slot = g['slot']
        tmp = V(226) if regk[kv] < 96 else vT3[0]
        ops = [valu("v_accvgpr_read_b32", tmp, aST[ST_KW])]
        if slot >= 4: ops.append(valu("v_add_u32", tmp, (slot // 4) * 65536, tmp))
        wt = []
        for i_ in range(4):
            w_ = ds_write("ds_write_b128", tmp, A(regk[kv] + 4 * i_, 4), (slot % 4) * 16384 + i_ * 1024, needs=[rtok[kv][i_]]); ops.append(w_); wt.append(w_.tok)
        ps = T.chain(ops, g['pos'])
        assert ps[-1] < un['bar'] - 4
        if regk[kv] < 96: assert ps[-1] < qend + (regk[kv] // 4) * 4 - 2 or ps[-1] < qend, (kv, ps, qend)
        else: assert ps[0] > max(wt_pos) + 1, (kv, ps)
        un['barins'].needs += wt
    T.chain([valu("v_accvgpr_read_b32", vKD[i], aST[ST_WOD + i]) for i in range(4)], last_k_pos + 1, hard_end=first_wo - 2)

    spin = []
    def spin_code(name, load, test):
        spin.extend([label(f"L_spin{name}"), raw("s_sleep 2"),
                     raw(f"s_add_u32 {sSPIN}, {sSPIN}, 1"), raw(f"s_cmp_gt_u32 {sSPIN}, 0x40000"), raw(f"s_cbranch_scc1 L_ret{name}"),
                     raw(load), raw("s_waitcnt vmcnt(0)")] + [raw(t) for t in test] +
                    [raw(f"s_cbranch_scc1 L_spin{name}"), raw(f"s_branch L_ret{name}")])
    a_ = Ins(f"buffer_atomic_add {vT3[1]}, {vT3[0]}, {rDB}, 0 offen sc1", 'vmem', (), vT3.set() | rDB.set(), needs=[zst.tok]); a_.tok = Tok('vm')
    T.chain([valu("v_accvgpr_read_b32", vT3[0], aST[ST_DA]), valu("v_mov_b32", vT3[1], 1), a_], qend + 2)
    T.chain([valu("v_accvgpr_read_b32", vT3[0], aST[ST_WT])], wt0 - 5, hard_end=wt0 - 1)
    ild = buf_load("buffer_load_dword", vT3[1], vT3[0], rDB, 0, 0, "sc1")
    T.chain([valu("v_accvgpr_read_b32", vT3[0], aST[ST_DA]), ild], plan[U('k', 13)]['base'] + 1)
    ichk = [valu("v_readfirstlane_b32", sFL, vT3[1], needs=[ild.tok]), salu("s_lshl_b32", sT0, sWAVE, 4), salu("s_add_u32", sFL, sFL, sT0),
            salu("s_cmp_lt_u32", None, sFL, 16), raw("s_cbranch_scc1 L_spinI", 'branch'), label("L_retI")]
    spin_code("I", f"buffer_load_dword {vT3[1]}, {vT3[0]}, {rDB}, 0 offen sc1",
              [f"v_readfirstlane_b32 {sFL}, {vT3[1]}", "s_nop 4", f"s_cmp_lt_u32 {sFL}, 16"])

    def max_ops(srcs, n, ta, tb_):
        ops = [valu("v_max3_f32", ta, srcs[0], srcs[1], srcs[2])]
        k = 3
        while k + 1 < len(srcs): ops.append(valu("v_max3_f32", ta, ta, srcs[k], srcs[k + 1])); k += 2
        if k < len(srcs): ops.append(valu("v_max_f32", ta, ta, srcs[k]))
        ops.append(valu("v_mov_b32", tb_, ta)); ops.append(valu("v_permlane16_swap_b32", ta, tb_)); ops.append(valu("v_max_f32", ta, ta, tb_))
        ops.append(valu("v_mov_b32", tb_, ta)); ops.append(valu("v_permlane32_swap_b32", ta, tb_)); ops.append(valu("v_max_f32", ta, ta, tb_))
        for k_ in range(4): ops.append(valu("v_sub_f32", vNEGM[4 * n + k_], 0, ta))
        return ops
    def softmax_ops(u, sreg, sub):
        ops = []; pend = None
        for n in range(3):
            for kt in range(2):
                s4 = sreg(kt, n); p = Preg(u, n)
                if sub:
                    for k_ in range(4): ops.append(valu("v_add_f32", s4[k_], s4[k_], vNEGM[4 * n]))
                for k_ in range(4):
                    ops.append(valu("v_exp_f32", s4[k_], s4[k_]))
                    if pend and k_ in (0, 2): ops.append(pend.pop(0))
                pend = [valu("v_cvt_pk_bf16_f32", p[2 * kt], s4[0], s4[1]), valu("v_cvt_pk_bf16_f32", p[2 * kt + 1], s4[2], s4[3])]
        return ops + pend
    for u in range(16):
        nxt = plan[14 + u + 1]; b0 = nxt['base']
        if u < 2:
            ops = []
            if u == 0:
                for n in range(3): ops += max_ops([Sreg(0, kt, n)[k_] for kt in range(2) for k_ in range(4)], n, vT3[0], vT3[1])
            ops += softmax_ops(u, lambda kt, n: Sreg(u, kt, n), True)
            T.chain(ops, b0 + 3, end=b0 + 46, hard_end=b0 + 47)
        else:
            start = b0 + (0 if nxt['kind'] == 'k' or True else 3)
            exps = [(kt, n, k_) for n in range(3) for kt in range(2) for k_ in range(4)]
            eo = [valu("v_exp_f32", Sreg(u, kt, n)[k_], Sreg(u, kt, n)[k_]) for kt, n, k_ in exps]
            ep = T.chain(eo, start, hard_end=b0 + 44)
            for j_ in range(12):
                kt, n, k_ = exps[2 * j_]; s4 = Sreg(u, kt, n)
                c_ = valu("v_cvt_pk_bf16_f32", Preg(u, n)[2 * kt + k_ // 2], s4[k_], s4[k_ + 1])
                q = ep[2 * j_ + 1] + 1
                cand = [x for x in range(q, b0 + 47) if T.free(x, c_)]
                half = [x for x in cand if T.gap(x)['nv'] + max(0, T.gap(x)['ns'] - 1) == 1]
                T.put((half or cand or [b0 + 47])[0], c_)

    chk = list(ichk)
    for n in range(3): chk.append(valu("v_accvgpr_read_b32", vT3[0] if n == 0 else (vT3[1] if n == 1 else V(192)), aL[4 * n]))
    if cfg.fallback:
        chk.append(valu("v_add_f32", V(194), vT3[0], vT3[1])); chk.append(valu("v_add_f32", V(194), V(194), V(192)))
        chk.append(salu("s_mov_b32", sT0, hex(L_LIMIT)))
        chk.append(valu("v_cmp_nge_f32", "vcc", sT0, V(194)))
        chk.append(raw("s_cbranch_vccnz L_fallback", 'branch', rd=['vcc']))
        chk.append(label("L_fb_ret"))
    T.raw(v0['end'], *chk)
    T.chain([valu("v_rcp_f32", vR[0], vT3[0]), valu("v_rcp_f32", vR[1], vT3[1]), valu("v_rcp_f32", vR[2], V(192)),
             valu("v_accvgpr_read_b32", vFA, aST[ST_FA]), valu("v_accvgpr_read_b32", vFG, aST[ST_FG]),
             valu("v_accvgpr_read_b32", vWOR, aST[ST_WOR])], v0['end'] + 1)

    def epi_ops(sl):
        ops = []; k_ = 0
        for tt in range(2):
            for n in range(3):
                pk = PKR[(tt * 3 + n) * 4:(tt * 3 + n) * 4 + 4]
                for hf in range(2):
                    tb_ = V(216 + 4 * (k_ % 3), 4); k_ += 1
                    a4 = Oacc(sl, 2 * tt + hf, n)
                    for i in range(4): ops.append(valu("v_accvgpr_read_b32", tb_[i], a4[i]))
                    for i in range(4): ops.append(valu("v_mul_f32", tb_[i], tb_[i], vR[n]))
                    for i in range(2): ops.append(valu("v_cvt_pk_bf16_f32", pk[2 * hf + i], tb_[2 * i], tb_[2 * i + 1]))
        return ops
    def flagst(val):
        return [valu("v_mov_b32", vFD, val), buf_store("buffer_store_dword", vFD, vFA, rFL, 0, 0, "sc1")]
    for sl in range(4):
        cpos = ckpos[sl]; pb = bar(pub_ui[sl])
        pp = T.chain(flagst(sl + 1), pb + 1, hard_end=pb + 4)
        ld = buf_load("buffer_load_dword", vFP, vFG, rFL, 0, 0, "sc1")
        lp = T.put(max(cpos - cfg.cklead, min(pb + 45, cpos - 30), pp[-1] + 1), ld)
        ck = [valu("v_cmp_gt_u32", "vcc", sl + 1, vFP, needs=[ld.tok]),
              raw("s_cmp_lg_u64 vcc, 0", 'salu', rd=['vcc']),
              raw(f"s_cbranch_scc1 L_spin{sl}", 'branch'), label(f"L_ret{sl}")]
        if cfg.stamps: ck = st.stamp(f"ck{sl}a") + ck + st.stamp(f"ck{sl}b")
        T.raw(cpos, *ck)
        spin_code(str(sl), f"buffer_load_dword {vFP}, {vFG}, {rFL}, 0 offen sc1",
                  [f"v_cmp_gt_u32 vcc, {sl + 1}, {vFP}", "s_nop 4", "s_cmp_lg_u64 vcc, 0"])
        print(f"slice {sl}: epi {epi_win[sl]} publish {pb} flagload {lp} check {cpos} opbase {plan[UO(sl, 0)]['base']}", file=sys.stderr)
    for sl in range(4):
        ops = epi_ops(sl)
        e0, e1 = epi_win[sl]
        step = (e1 - e0) // 6 + 1
        p_ = e0
        for kk in range(6):
            if sl: p_ = max(p_, st_g[sl - 1, kk]['ap'][0] + 2)
            ps = T.chain(ops[20 * kk:20 * kk + 20], p_, hard_end=min(e0 + (kk + 1) * step, e1))
            assert ps[-1] < st_g[sl, kk]['ap'][0] and ps[0] >= p_, (sl, kk, ps, st_g[sl, kk]['ap'])
            p_ = ps[-1] + 1
        for s2 in range(sl + 1, 4):
            if OBUF[s2] == OBUF[sl]: assert e1 < plan[U('v', 4 * s2)]['base'], "O acc reuse"
        assert e1 < plan[U('o', 4 * sl + 3)]['base'], "epilogue must finish before own-head unit"
        if sl: assert e0 >= plan[U('o', 4 * sl - 1)]['end']

    fin = plan[-1]
    vL16, vO, vLN, vPF = V(192), V(193), V(194), V(195)
    pre_t = lane_id(vLN) + [valu("v_lshlrev_b32", vL16, 4, vLN),
             valu("v_and_b32", V(196), 15, vLN), valu("v_lshrrev_b32", V(197), 4, vLN),
             valu("v_mul_u32_u24", vO, 896, V(196)), valu("v_lshl_add_u32", vO, V(197), 3, vO),
             salu("s_lshl_b32", sT2, sIH, 8), valu("v_and_b32", vPF, 3, vLN), valu("v_lshlrev_b32", vPF, 10, vPF), valu("v_add_u32", vPF, sT2, vPF)]
    T.chain(pre_t, plan[-2]['base'], hard_end=fin['base'] + 20)
    def part_ops(pc):
        ops = []
        for n in range(3):
            sl_ = pc * 3 + n
            tb_ = V(12 * (sl_ % 8), 12)
            nt2 = 2 if pc < 3 else 1
            for hf in range(nt2):
                for i in range(4): ops.append(valu("v_accvgpr_read_b32", tb_[4 * hf + i], Out(2 * pc + hf, n)[i]))
            for i in range(2 * nt2): ops.append(valu("v_cvt_pk_bf16_f32", tb_[8 + i], tb_[2 * i], tb_[2 * i + 1]))
            if n == 0: ops.append(salu("s_add_u32", sT1, sPS, pc * 3072))
            ops.append(buf_store("buffer_store_dwordx4" if nt2 == 2 else "buffer_store_dwordx2", tb_[8:8 + 2 * nt2], vL16, rPT, sT1, n * 1024, "sc1"))
        return ops
    lastq = fin['base'] + 21
    for pc in range(3):
        ps = T.chain(part_ops(pc), max(fin['base'] + 36 * (pc + 1) + 4, lastq + 1), hard_end=end_pos - 1)
        lastq = ps[-1]
    tail = []; A_ = tail.append
    tail += st.stamp('opend')
    tail += part_ops(3)
    A_(valu("v_mov_b32", vFD, 5))
    A_(wait_all())
    A_(barrier())
    A_(buf_store("buffer_store_dword", vFD, vFA, rFL, 0, 0, "sc1"))
    tail += st.stamp('pub')
    A_(label("L_poll"))
    A_(raw(f"buffer_load_dword v198, {vPF}, {rFL}, 0 offen sc1", 'other')); A_(raw("s_waitcnt vmcnt(0)"))
    A_(raw("v_cmp_gt_u32 vcc, 5, v198")); A_(raw("s_nop 4")); A_(raw("s_cmp_eq_u64 vcc, 0"))
    A_(raw("s_cbranch_scc1 L_pollskip")); A_(raw("s_sleep 1"))
    A_(raw(f"s_add_u32 {sSPIN}, {sSPIN}, 1")); A_(raw(f"s_cmp_gt_u32 {sSPIN}, 0x40000")); A_(raw("s_cbranch_scc0 L_poll"))
    A_(label("L_pollskip"))
    tail += st.stamp('polled')
    lt = {}
    for k in range(4):
        if k: A_(salu("s_add_u32", sSRC, sSRC, 12288))
        for n in range(3):
            l_ = buf_load("buffer_load_dwordx4", V(16 * n + 4 * k, 4), vL16, rPT, sSRC, n * 1024, "sc1"); A_(l_); lt[n, k] = l_.tok
    A_(salu("s_mov_b32", sT0, "0xffff0000"))
    for k in range(4):
        for n in range(3):
            acc = V(64 + 8 * n, 8); src = V(16 * n + 4 * k, 4)
            for i in range(4):
                if k == 0:
                    A_(valu("v_lshlrev_b32", acc[2 * i], 16, src[i], needs=[lt[n, k]])); A_(valu("v_and_b32", acc[2 * i + 1], sT0, src[i]))
                else:
                    t0_, t1_ = V(96 + 2 * (i % 2)), V(97 + 2 * (i % 2))
                    A_(valu("v_lshlrev_b32", t0_, 16, src[i], needs=[lt[n, k]])); A_(valu("v_and_b32", t1_, sT0, src[i]))
                    A_(valu("v_add_f32", acc[2 * i], acc[2 * i], t0_)); A_(valu("v_add_f32", acc[2 * i + 1], acc[2 * i + 1], t1_))
            if k == 3:
                pk = V(100 + 4 * n, 4)
                for i in range(4): A_(valu("v_cvt_pk_bf16_f32", pk[i], acc[2 * i], acc[2 * i + 1]))
                if n: A_(valu("v_add_u32", vO, 16 * 896, vO))
                A_(buf_store("buffer_store_dwordx2", pk[0:2], vO, rOUT, sO1, 0))
                A_(buf_store("buffer_store_dwordx2", pk[2:4], vO, rOUT, sO2, 0))
    if cfg.stamps:
        tail += [wait_all()] + st.stamp('end') + st.flush(V(0, 4), 0)
    main = pro + T.flatten() + tail + [label("L_end"), raw("s_endpgm")]

    fb = []
    if cfg.fallback:
        F = fb.append
        F(label("L_fallback")); F(raw("s_nop 15")); F(wait_all())
        vKG = V(216); mx = V(217, 3); ta, tb_ = V(220), V(221)
        Sf = lambda kt, n: V(192 + (kt * 3 + n) * 4, 4)
        kf = lambda i: aX[4 * (i % 6):4 * (i % 6) + 4]
        F(valu("v_accvgpr_read_b32", vKG, aST[ST_KG]))
        def s_unit(cinit):
            ops = []
            for half in range(4):
                lds_ = []
                for q in range(4):
                    i = 4 * half + q; s_, kt = divmod(i, 2)
                    l_ = buf_load("buffer_load_dwordx4", kf(q), vKG, rK, sF1 if kt else sF0, s_ * 64); ops.append(l_); lds_.append(l_.tok)
                for q in range(4):
                    i = 4 * half + q; s_, kt = divmod(i, 2)
                    for n in range(3):
                        ops.append(mfma16(Sf(kt, n), kf(q), Qf(s_, n), Sf(kt, n) if s_ else cinit(n), needs=[lds_[q]]))
                ops.append(nop(7))
            return ops
        for n in range(3): F(valu("v_mov_b32", mx[n], "0xff800000"))
        F(salu("s_mov_b32", sF0, 0)); F(salu("s_mov_b32", sF1, 8192))
        F(label("L_fb_max"))
        fb += s_unit(lambda n: 0)
        for n in range(3):
            for kt in range(2):
                s4 = Sf(kt, n)
                F(valu("v_max3_f32", mx[n], mx[n], s4[0], s4[1])); F(valu("v_max3_f32", mx[n], mx[n], s4[2], s4[3]))
        F(salu("s_add_u32", sF0, sF0, 16384)); F(salu("s_add_u32", sF1, sF1, 16384))
        F(salu("s_cmp_lt_u32", None, sF0, 262144)); F(raw("s_cbranch_scc1 L_fb_max", 'branch'))
        for n in range(3): fb += max_ops([mx[n], mx[n], mx[n]], n, ta, tb_)
        for u in range(16):
            F(salu("s_mov_b32", sF0, u * 16384)); F(salu("s_mov_b32", sF1, u * 16384 + 8192))
            fb += s_unit(lambda n: vNEGM[4 * n:4 * n + 4])
            fb += softmax_ops(u, Sf, False)
            fb += ones(u, u == 0)
        slot = v0['slots'][0]
        va_ = V(192, 4)
        for t in range(4):
            F(valu("v_accvgpr_read_b32", va_[t], aST[ST_VR + t])); F(valu("v_add_u32", va_[t], slot * 16384, va_[t]))
        mfs = pv_mf(0, 0, lambda i: kf(i % 4))
        for ks in range(4):
            for t in range(4):
                for hh in range(2):
                    r = ds_read("ds_read_b64_tr_b16", kf(t)[2 * hh:2 * hh + 2], va_[t], ks * 4096 + hh * 2048); F(r)
                    mfs[3 * (4 * ks + t)].needs.append(r.tok)
            fb += mfs[12 * ks:12 * ks + 12]
            F(nop(7))
        F(nop(7))
        for n in range(3): F(valu("v_accvgpr_read_b32", vT3[0] if n == 0 else (vT3[1] if n == 1 else V(192)), aL[4 * n]))
        F(wait_all()); F(nop(3))
        F(raw("s_branch L_fb_ret", 'branch'))
    print("per-unit overflow:", " ".join(f"{u['kind']}{u['idx']}:{T.stats(u['base'], u['end'])}" for u in plan), file=sys.stderr)
    return main, spin, fb


HEADER = open("cdna_kernels/" + NAME + ".s.ref").read().split("; Override launch")[0]


def build(cfg, path):
    L = [HEADER.rstrip("\n")]
    L.append("; @launch grid=(256,1,1) block=(256,1,1) lds=163840")
    L.append('.amdgcn_target "amdgcn-amd-amdhsa--gfx950"')
    L.append(".text")
    main, spin, fb = kernel(cfg)
    L += render(main); L += render(spin); L += render(fb)
    for k_, v_ in STAMP_NAMES.items(): L.append(f"; STAMPS {k_} " + ",".join(v_))
    L.append(kd(KNAME))
    open(path, "w").write("\n".join(L) + "\n")


if __name__ == "__main__":
    import argparse
    ap = argparse.ArgumentParser()
    ap.add_argument("-o", default="cdna_kernels/" + NAME + ".s")
    ap.add_argument("--stamps", action="store_true")
    ap.add_argument("--opt", action="append", default=[])
    a = ap.parse_args()
    cfg = Cfg(); cfg.stamps = a.stamps
    for o_ in a.opt:
        k_, v_ = o_.split("=", 1)
        assert hasattr(cfg, k_), k_
        try: v_ = int(v_)
        except ValueError: pass
        setattr(cfg, k_, v_)
    build(cfg, a.o)
```

```python
import sys, struct, math
sys.path.insert(0, "dev")
from dsl import *

NAME = "standalone__mha_block_cached__near_ridge"
KNAME = NAME + "_kernel"
B, SQ, D, H, SK, DH = 16, 192, 448, 16, 512, 256
WS_OF = 0
WS_PT = 32 << 20
WS_FL = 60 << 20
WS_STAMP = 64 << 20

def f2u(x): return struct.unpack("<I", struct.pack("<f", x))[0]
QSCALE = f2u(math.log2(math.e) / 16.0)
L_LIMIT = f2u(2.0 ** 24)
OOB = "0x7ff00000"

sWAVE = S(3); sB, sH = S(4), S(5)
sT0, sT1, sT2, sT3 = S(6), S(7), S(12), S(13)
sKV, sW = S(8), S(9)
sM0K = S(10); sM0X = S(11); sC = S(14, 2)
P_X, P_K, P_V, P_WQ, P_WO, P_OUT, P_DBG, P_WS = [S(16 + 2 * i, 2) for i in range(8)]
rX, rWQ, rK, rV, rWO, rOF, rPT, rOUT, rST, rFL = [S(32 + 4 * i, 4) for i in range(10)]
sX = S(72); sOS = S(73); sOL = S(74); sJH = S(75); sIH = S(76); sOSB = S(77); sFL = S(78); sPS = S(79)
sSTAMP0 = 80
sF0, sF1 = S(84), S(85); sSPIN = S(86); sTO = S(87)
rDB = S(88, 4); rT = S(92, 4)
sOH = [S(96), S(97), S(98)]; sWH = [S(99), S(100), S(101), S(82)]
sO1, sO2 = S(83), S(16); sSRC = S(17)


class Cfg:
    stamps = False; dbg = ''
    kv_flags = "nt"; q_flags = ""; wo_flags = ""; wt_flags = ""
    nfr = 12
    kv0 = 8; d1 = 17; d2 = 12; d3 = 12; minlead = 110; kvprio = 60
    nreg = 6; wrlag = 130
    ga1 = 4; ga2 = 4; ga3 = 4
    porder = 'W0,X0|W1'
    epilen = 118; epilen3 = 100; stgap = 30; stgap3 = 0
    publag = 76; cklag = 200; cklead = 100; olead = 100; olead3 = 110; olmax = 500
    womax = 0; womaxlead = 900; wtgap = 150; wtpos = 4; wourg = 150
    ctouch = 1; fallback = 1; late0 = 2; kvwin = 4; kvwin0 = 13; stampmod = 4; ckst = 0


STAMP_NAMES = {}
class Stamper:
    def __init__(self, on, dbg=''): self.on, self.n = on, 0; self.names = []; self.dbg = dbg
    def _w(self, op, name):
        r = S(sSTAMP0, 2); i = self.n; self.n += 1; self.names.append(name)
        assert self.n <= 64
        return [raw(f"{op} {r}", 'smem', wr=[r]), wait_all(vm=False),
                raw(f"v_writelane_b32 v255, {r[0]}, {i}", 'valu', wr=[V(255)], rd=[r[0]])]
    def start(self):
        return self._w("s_memrealtime", "rt0") + self._w("s_memrealtime", "t0") if self.on else []
    def stamp(self, name=""):
        return self._w("s_memrealtime", name) if self.on else []
    def flush(self, vt, kidx):
        if not self.on: return []
        ops = self._w("s_memrealtime", "rt1")
        ops.append(salu("s_lshl_b32", sT0, S(2), 2)); ops.append(salu("s_add_u32", sT0, sT0, sWAVE))
        ops.append(salu("s_lshl_b32", sT0, sT0, 8)); ops.append(salu("s_add_u32", sT0, sT0, kidx << 20))
        ops += lane_id(vt[0])
        ops.append(valu("v_lshlrev_b32", vt[0], 2, vt[0]))
        ops.append(buf_store("buffer_store_dword", V(255), vt[0], rST, sT0, 0))
        ops.append(wait_all())
        STAMP_NAMES[kidx] = self.names
        return ops


def lane_id(v):
    return [raw(f"v_mbcnt_lo_u32_b32 {v}, -1, 0", 'valu', wr=[v]), raw(f"v_mbcnt_hi_u32_b32 {v}, -1, {v}", 'valu', wr=[v], rd=[v])]


def srd(ops, r, ptr, off_lo=None, off_hi=0, size=0):
    if off_lo is None:
        ops.append(salu("s_mov_b32", r[0], ptr[0])); ops.append(salu("s_mov_b32", r[1], ptr[1]))
    else:
        ops.append(Ins(f"s_add_u32 {r[0]}, {ptr[0]}, {off_lo}\n    s_addc_u32 {r[1]}, {ptr[1]}, {off_hi}", 'salu',
                       r[0:2].set() | {('scc', 0)}, ptr.set() | rset(off_lo) | rset(off_hi)))
    ops.append(salu("s_mov_b32", r[2], size)); ops.append(salu("s_mov_b32", r[3], "0x20000"))


def kd(name, nv=512, acc=256):
    return f""".section .rodata,"a"
.p2align 6
.amdhsa_kernel {name}
  .amdhsa_next_free_vgpr {nv}
  .amdhsa_next_free_sgpr 102
  .amdhsa_accum_offset {acc}
  .amdhsa_group_segment_fixed_size 0
  .amdhsa_kernarg_size 64
  .amdhsa_user_sgpr_count 2
  .amdhsa_user_sgpr_kernarg_segment_ptr 1
  .amdhsa_system_sgpr_workgroup_id_x 1
.end_amdhsa_kernel
"""

WB = [0, 16384, 32768, 49152]
XB = [65536, 65536 + 24576]
vWR = V(192, 8); vXR = V(200, 2); vWD = V(202, 4); vXD = V(206, 4); vTMP = V(210, 18)
vNEGM = V(228, 12); vKR = V(240, 4); vKD = V(244, 4); vVD = V(248, 4); vOST = V(252); vT3 = V(253, 2)
vR = V(228, 3); vWOR = V(231); vFA = V(232); vFD = V(233); vFP = V(234); vFG = V(235); vWOR3 = V(236, 3)
aFR = A(96, 48); aX = A(144, 24); aXF = A(144, 36); aL = A(168, 12); aONE = A(180, 4); aST = A(184, 16)
aOUT = A(172, 84)
ST_VR, ST_WOD, ST_WOR, ST_FA, ST_KG, ST_FG, ST_DA, ST_KW, ST_WT = 0, 4, 8, 9, 11, 12, 13, 14, 15

def Qacc(t, n): return V((t * 3 + n) * 4, 4)
def Qf(s, n): return A((s * 3 + n) * 4, 4)
def SB(u): return 180 if u % 2 == 0 else 204
def Sreg(u, kt, n): return V(SB(u) + (kt * 3 + n) * 4, 4)
def Preg(u, n): return V((12 * u if u < 15 else 180) + 4 * n, 4)
OBUF = [200, 0, 48, 0]
def Oacc(sl, t, n): return A(OBUF[sl] + (t * 3 + n) * 4, 4)
def Out(nt, n): return aOUT[(nt * 3 + n) * 4:(nt * 3 + n) * 4 + 4]
BB = {(0, 0): A(144, 24), (0, 1): V(0, 24), (0, 2): V(24, 24), (1, 0): V(48, 24), (1, 1): V(72, 24), (1, 2): V(96, 24),
      (2, 0): V(120, 24), (2, 1): A(48, 24), (2, 2): A(72, 24), (3, 0): V(144, 24), (3, 1): V(168, 24), (3, 2): A(0, 24)}
PKR = V(192, 24)


def kernel(cfg):
    st = Stamper(cfg.stamps, cfg.dbg)
    NFR = cfg.nfr
    pro = [Ins(f".globl {KNAME}", 'dir'), Ins(".p2align 8", 'dir'), Ins(f".type {KNAME},@function", 'dir'), label(KNAME)]
    P = pro.append
    P(salu("s_cmp_ge_u32", None, S(2), 256)); P(raw("s_cbranch_scc1 L_end", 'branch'))
    P(raw("s_load_dwordx16 s[16:31], s[0:1], 0", 'smem', wr=[S(16, 16)]))
    pro += st.start()
    vl, vw, vg, vm, va, vb, vc, vd, r4, cc, ve, vti = [V(210 + i) for i in range(12)]
    P(valu("v_lshrrev_b32", vw, 6, V(0))); P(valu("v_and_b32", vl, 63, V(0)))
    P(valu("v_readfirstlane_b32", sWAVE, vw))
    P(valu("v_lshrrev_b32", vg, 4, vl)); P(valu("v_and_b32", vm, 15, vl)); P(valu("v_mov_b32", vti, V(0)))
    P(salu("s_and_b32", sT0, S(2), 7)); P(salu("s_lshr_b32", sT1, S(2), 3))
    P(salu("s_lshr_b32", sB, sT0, 2)); P(salu("s_lshl_b32", sB, sB, 3)); P(salu("s_lshr_b32", sT2, sT1, 2)); P(salu("s_add_u32", sB, sB, sT2))
    P(salu("s_and_b32", sJH, sT0, 3)); P(salu("s_and_b32", sIH, sT1, 3)); P(salu("s_lshl_b32", sH, sJH, 2)); P(salu("s_add_u32", sH, sH, sIH))
    P(salu("s_lshl_b32", sM0K, sWAVE, 12)); P(salu("s_mul_i32", sM0X, sWAVE, 6144))
    P(valu("v_lshrrev_b32", va, 5, vl))
    P(valu("v_and_b32", vb, 1, vw)); P(valu("v_lshlrev_b32", vb, 3, vb))
    P(valu("v_and_b32", vc, 31, vl))
    P(valu("v_lshl_add_u32", ve, vw, 3, va)); P(valu("v_lshlrev_b32", ve, 13, ve))
    for i in range(2):
        P(valu("v_lshl_add_u32", vd, va, 1, vb))
        if i: P(valu("v_add_u32", vd, 4, vd))
        P(valu("v_xor_b32", vd, vd, vc)); P(valu("v_lshl_add_u32", vWD[i], vd, 4, ve))
        if i: P(valu("v_add_u32", vWD[i], 2 * 8192 - 1024, vWD[i]))
        P(valu("v_add_u32", vWD[i + 2], 4 * 8192 - 2048, vWD[i]))
    P(valu("v_mul_u32_u24", ve, 48, vw)); P(valu("v_lshrrev_b32", vd, 3, vl)); P(valu("v_add_u32", ve, ve, vd)); P(valu("v_mul_u32_u24", ve, 896, ve))
    P(valu("v_and_b32", vd, 7, vl)); P(valu("v_xor_b32", vd, vd, vg))
    P(valu("v_lshl_add_u32", vXD[0], vd, 4, ve))
    P(valu("v_xor_b32", vd, 4, vd)); P(valu("v_lshl_add_u32", vXD[1], vd, 4, ve)); P(valu("v_add_u32", vXD[1], 8 * 896 - 1024, vXD[1]))
    P(valu("v_add_u32", vXD[2], 16 * 896 - 2048, vXD[0])); P(valu("v_add_u32", vXD[3], 16 * 896 - 2048, vXD[1]))
    P(salu("s_lshl_b32", sT1, sH, 9)); P(salu("s_mul_i32", sT2, sB, SQ * D * 2))
    P(wait_all(vm=False))
    srd(pro, rWQ, P_WQ, sT1, 0, 447 * 8192 + 512)
    srd(pro, rX, P_X, sT2, 0, SQ * D * 2)

    def tag(lst):
        cur = None
        for pre, m0, ld in lst:
            if pre: cur = pre[-1]
            ld.expect = [cur] + ([m0] if m0 is not None else [])
        return lst
    def dma_w(s):
        return tag([([salu("s_mov_b32", sW, s * 32 * 8192)] if i == 0 else [], salu("s_add_u32", "m0", sM0K, WB[s % 4]),
                     buf_load_lds(vWD[i], rWQ, sW, i * 1024, cfg.q_flags)) for i in range(4)])
    def dma_x(j):
        out = []
        for i in range(6):
            pre = [salu("s_mov_b32", sX, j * 128 + (32 * 896 if i else 0))] if i in (0, 4) else []
            out.append((pre, salu("s_add_u32", "m0", sM0X, XB[j % 2] + (4096 if i >= 4 else 0)),
                        buf_load_lds(vXD[i % 4], rX, sX, (i % 4) * 1024, cfg.q_flags)))
        return tag(out)
    def dma_kv(kv, slot):
        out = []
        for i in range(4):
            if kv < 16:
                pre = [salu("s_mov_b32", sKV, kv * 16384)] if i == 0 else []
                ld = buf_load_lds(vKD[i], rK, sKV, i * 1024, cfg.kv_flags)
            else:
                s_, kb = divmod(kv - 16, 4)
                pre = [salu("s_mov_b32", sKV, kb * 65536 + s_ * 128)] if i == 0 else []
                ld = buf_load_lds(vVD[i], rV, sKV, i * 1024, cfg.kv_flags)
            out.append((pre, salu("s_add_u32", "m0", sM0K, slot * 16384), ld))
        return tag(out)
    def dma_wo(sl, hh, slot):
        return tag([([salu("s_add_u32", sW, sWH[hh], sl * 64 * 896)] if i == 0 else [], salu("s_add_u32", "m0", sM0K, slot * 16384),
                     buf_load_lds(vKD[i], rWO, sW, i * 1024, cfg.wo_flags)) for i in range(4)])
    def emit_now(lst):
        last = None
        for pre, m0, ld in lst:
            pro.extend(pre)
            if m0.text != last: P(m0); last = m0.text
            P(ld)
        return [ld.tok for _, _, ld in lst]

    wtok, xtok = {}, {}
    pgroups = [g.split(',') if g else [] for g in cfg.porder.split('|')]
    def pemit(k):
        for t in pgroups[k]:
            if t[0] == 'W': wtok[int(t[1])] = emit_now(dma_w(int(t[1])))
            else: xtok[int(t[1])] = emit_now(dma_x(int(t[1])))
    pemit(0)
    if cfg.ctouch:
        P(raw(f"s_getpc_b64 {S(84, 2)}", 'salu', wr=[S(84, 2)]))
        P(salu("s_lshr_b32", sT0, S(2), 3)); P(salu("s_lshl_b32", sT0, sT0, 2)); P(salu("s_add_u32", sT0, sT0, sWAVE)); P(salu("s_lshl_b32", sT0, sT0, 9))
        P(valu("v_and_b32", vd, 3, vl)); P(valu("v_lshlrev_b32", vd, 7, vd)); P(valu("v_add_u32", vd, sT0, vd))
        cl_ = Ins(f"global_load_dword a255, {vd}, {S(84, 2)}", 'vmem', A(255).set(), vd.set() | S(84, 2).set()); cl_.tok = Tok('vm'); P(cl_)
    P(salu("s_lshl_b32", sT0, sB, 4)); P(salu("s_add_u32", sT0, sT0, sH)); P(salu("s_lshl_b32", sT1, sT0, 18))
    srd(pro, rK, P_K, sT1, 0, 262144); srd(pro, rV, P_V, sT1, 0, 262144)
    P(valu("v_lshlrev_b32", ve, 9, va)); P(valu("v_lshl_add_u32", ve, vw, 12, ve)); P(valu("v_add_u32", va, va, vb))
    for i in range(4):
        P(valu("v_add_u32", vd, 2 * i, va)); P(valu("v_xor_b32", vd, vd, vc)); P(valu("v_lshl_add_u32", vKD[i], vd, 4, ve))
    P(valu("v_lshrrev_b32", r4, 2, vm)); P(valu("v_and_b32", cc, 3, vm))
    P(valu("v_and_b32", va, 1, vg)); P(valu("v_lshl_add_u32", va, va, 2, r4)); P(valu("v_lshlrev_b32", va, 1, va))
    P(valu("v_lshrrev_b32", vb, 1, cc))
    P(valu("v_lshl_add_u32", vc, vg, 3, r4)); P(valu("v_lshlrev_b32", vc, 9, vc))
    P(valu("v_and_b32", vd, 1, cc)); P(valu("v_lshl_add_u32", vc, vd, 3, vc))
    P(valu("v_xor_b32", vd, vb, va)); P(valu("v_lshl_add_u32", vWR[0], vd, 4, vc))
    for tb in range(1, 8): P(valu("v_xor_b32", vWR[tb], 32 * tb, vWR[0]))
    P(valu("v_lshrrev_b32", vd, 1, vm)); P(valu("v_xor_b32", vd, vd, vg)); P(valu("v_lshlrev_b32", vd, 4, vd))
    P(valu("v_lshl_add_u32", vXR[0], vm, 7, vd)); P(valu("v_add_u32", vXR[0], sM0X, vXR[0])); P(valu("v_add_u32", vXR[0], XB[0], vXR[0]))
    P(valu("v_xor_b32", vXR[1], 64, vXR[0]))
    pemit(1)

    late = []; P = late.append
    P(salu("s_mov_b32", sC[0], hex(QSCALE))); P(salu("s_mov_b32", sC[1], hex(QSCALE)))
    P(salu("s_lshl_b32", sT0, sB, 12)); P(salu("s_add_u32", sT0, sT0, WS_FL)); srd(late, rFL, P_WS, sT0, 0, 4096)
    srd(late, rDB, P_DBG, None, 0, 256)
    P(salu("s_lshl_b32", sT0, sH, 8)); P(salu("s_lshl_b32", sT1, sB, 4))
    P(valu("v_mov_b32", vd, OOB)); P(valu("v_mov_b32", vc, sT0)); P(valu("v_mov_b32", va, sT1))
    P(valu("v_cmp_eq_u32", "vcc", 0, vti)); P(valu("v_cndmask_b32", vc, vd, vc, "vcc")); P(valu("v_cndmask_b32", va, vd, va, "vcc"))
    P(valu("v_accvgpr_write_b32", aST[ST_FA], vc)); P(valu("v_accvgpr_write_b32", aST[ST_DA], va))
    P(valu("v_mov_b32", ve, 0))
    zst = buf_store("buffer_store_dword", ve, vc, rFL, 0, 0, "sc1"); P(zst)
    P(salu("s_lshl_b32", sT0, sJH, 10)); P(valu("v_and_b32", va, 3, vl)); P(valu("v_lshlrev_b32", va, 8, va)); P(valu("v_add_u32", va, sT0, va))
    P(valu("v_accvgpr_write_b32", aST[ST_FG], va))
    P(valu("v_lshlrev_b32", va, 4, vl)); P(salu("s_mul_i32", sT0, sWAVE, 128 * 3072)); P(valu("v_add_u32", vOST, sT0, va))
    P(valu("v_add_u32", va, sM0K, va)); P(valu("v_accvgpr_write_b32", aST[ST_KW], va))
    P(valu("v_lshlrev_b32", vd, 1, vg)); P(valu("v_and_b32", va, 7, vl)); P(valu("v_xor_b32", vd, vd, va)); P(valu("v_lshlrev_b32", vd, 4, vd))
    P(valu("v_lshrrev_b32", va, 3, vl)); P(valu("v_lshl_add_u32", va, vw, 5, va)); P(valu("v_lshl_add_u32", vVD[0], va, 9, vd))
    for i in range(1, 4): P(valu("v_add_u32", vVD[i], i * (4096 - 1024), vVD[0]))
    P(valu("v_and_b32", va, 1, vg)); P(valu("v_lshlrev_b32", va, 1, va)); P(valu("v_lshrrev_b32", vd, 1, vg)); P(valu("v_or_b32", va, va, vd))
    P(valu("v_xor_b32", vd, va, vm)); P(valu("v_lshlrev_b32", vd, 4, vd)); P(valu("v_lshl_add_u32", vKR[0], vm, 9, vd))
    for sb in range(1, 4): P(valu("v_xor_b32", vKR[sb], 64 * sb, vKR[0]))
    P(valu("v_lshlrev_b32", vd, 4, va)); P(valu("v_lshl_add_u32", vd, vm, 9, vd)); P(valu("v_accvgpr_write_b32", aST[ST_KG], vd))
    P(valu("v_lshrrev_b32", va, 1, r4)); P(valu("v_lshl_add_u32", va, vg, 1, va)); P(valu("v_and_b32", va, 3, va)); P(valu("v_lshlrev_b32", va, 1, va))
    P(valu("v_lshl_add_u32", ve, vg, 2, r4))
    P(valu("v_lshlrev_b32", vc, 7, ve)); P(valu("v_and_b32", vd, 1, cc)); P(valu("v_lshl_add_u32", vc, vd, 3, vc))
    P(valu("v_xor_b32", vd, vb, va)); P(valu("v_lshl_add_u32", vc, vd, 4, vc))
    for t in range(4):
        P(valu("v_xor_b32", vd, 32 * t, vc)); P(valu("v_accvgpr_write_b32", aST[ST_VR + t], vd))
    P(valu("v_mul_u32_u24", vd, 224, ve)); P(valu("v_lshl_add_u32", vd, cc, 3, vd)); P(valu("v_accvgpr_write_b32", aST[ST_WOR], vd))
    P(salu("s_mov_b32", sT0, 4682)); P(valu("v_mov_b32", ve, OOB))
    for i in range(4):
        P(valu("v_lshl_add_u32", va, vw, 8, vl))
        if i: P(valu("v_add_u32", va, 64 * i, va))
        P(valu("v_mul_u32_u24", vc, sT0, va)); P(valu("v_lshrrev_b32", vc, 16, vc))
        P(valu("v_mul_u32_u24", vc, 896 - 224, vc)); P(valu("v_lshl_add_u32", vc, va, 4, vc))
        if i: P(valu("v_subrev_u32", vc, i * 1024, vc))
        P(valu("v_cmp_gt_u32", "vcc", 896, va)); P(valu("v_cndmask_b32", vc, ve, vc, "vcc"))
        P(valu("v_accvgpr_write_b32", aST[ST_WOD + i], vc))
    P(salu("s_lshr_b32", sT0, S(2), 6)); P(salu("s_lshl_b32", sT0, sT0, 8)); P(salu("s_lshr_b32", sT1, S(2), 3)); P(salu("s_and_b32", sT1, sT1, 7))
    P(salu("s_lshl_b32", sT1, sT1, 3)); P(salu("s_add_u32", sT0, sT0, sT1)); P(salu("s_lshl_b32", sT1, sWAVE, 1)); P(salu("s_add_u32", sT0, sT0, sT1))
    P(salu("s_mul_i32", sT0, sT0, 896))
    P(valu("v_lshlrev_b32", va, 7, vl)); P(valu("v_add_u32", va, sT0, va))
    P(valu("v_cmp_gt_u32", "vcc", 14, vl)); P(valu("v_cndmask_b32", va, ve, va, "vcc"))
    P(valu("v_accvgpr_write_b32", aST[ST_WT], va))
    P(valu("v_mov_b32", vd, "0x3f803f80"))
    for i in range(4): P(valu("v_accvgpr_write_b32", aONE[i], vd))
    P(salu("s_mul_i32", sT0, sB, 4 * 128 * 3072)); P(salu("s_mul_i32", sT1, sJH, 32 * 3072)); P(salu("s_add_u32", sT0, sT0, sT1))
    srd(late, rOF, P_WS, sT0, 0, 3 * 128 * 3072 + 32 * 3072)
    P(salu("s_mul_i32", sOSB, sIH, 8 * 3072))
    P(salu("s_mul_i32", sT0, sJH, 1024 * 896)); srd(late, rT, P_WO, sT0, 0, 1024 * 896)
    P(salu("s_mul_i32", sT1, sIH, 224)); P(salu("s_add_u32", sT0, sT0, sT1))
    srd(late, rWO, P_WO, sT0, 0, 1023 * 896 + 224)
    P(salu("s_lshl_b32", sT0, sB, 2)); P(salu("s_add_u32", sT0, sT0, sIH)); P(salu("s_mul_i32", sT0, sT0, 16 * 12288)); P(salu("s_add_u32", sT0, sT0, WS_PT))
    srd(late, rPT, P_WS, sT0, 0, 16 * 12288)
    P(salu("s_mul_i32", sT0, sB, 192 * 896)); P(salu("s_mul_i32", sT2, sJH, 48 * 896)); P(salu("s_add_u32", sT0, sT0, sT2)); P(salu("s_add_u32", sT0, sT0, sT1))
    srd(late, rOUT, P_OUT, sT0, 0, 47 * 896 + 224)
    if cfg.stamps: srd(late, rST, P_WS, WS_STAMP, 0, 128 << 20)
    P(salu("s_mov_b32", sSPIN, 0))
    for hh in range(4):
        P(salu("s_add_u32", sT0, sIH, hh + 1)); P(salu("s_and_b32", sT0, sT0, 3))
        if hh < 3: P(salu("s_mul_i32", sOH[hh], sT0, 8 * 3072))
        P(salu("s_mul_i32", sWH[hh], sT0, 256 * 896))
    P(salu("s_lshl_b32", sT0, sWAVE, 2)); P(salu("s_add_u32", sT0, sT0, sJH)); P(salu("s_mul_i32", sPS, sT0, 12288))
    P(salu("s_mul_i32", sT0, sJH, 4 * 12288)); P(salu("s_mul_i32", sT1, sWAVE, 3072)); P(salu("s_add_u32", sSRC, sT0, sT1))
    P(salu("s_lshl_b32", sO1, sWAVE, 6)); P(salu("s_add_u32", sT0, sWAVE, 1)); P(salu("s_lshr_b32", sT0, sT0, 2)); P(salu("s_lshl_b32", sT0, sT0, 30))
    P(salu("s_add_u32", sO2, sO1, 32)); P(salu("s_add_u32", sO2, sO2, sT0))

    T = Timeline()
    def fr(f): return aFR[(f % NFR) * 4:(f % NFR) * 4 + 4]
    plan = []
    fctr = [0]
    def add_unit(kind, idx, nf, mk, pre_extra=(), post_extra=()):
        for e in pre_extra: T.add(e)
        base = len(T.m); f0 = fctr[0]; fctr[0] += nf
        mf = mk(f0)
        for m in mf: T.add(m)
        for e in post_extra: T.add(e)
        plan.append(dict(kind=kind, idx=idx, base=base, mf=mf, nf=nf, f0=f0, end=len(T.m)))
    def ones(u, first=False):
        return [mfma16(aL[4 * n:4 * n + 4], aONE, Preg(u, n), 0 if first else aL[4 * n:4 * n + 4]) for n in range(3)]
    for s in range(14):
        add_unit('q', s, 16, lambda f0: [mfma16(Qacc(t, n), fr(f0 + t), aXF[(s % 3) * 12 + 4 * n:(s % 3) * 12 + 4 * n + 4], Qacc(t, n) if s else 0)
                                         for t in range(16) for n in range(3)])
    def conv_ops():
        conv = []; pend = None
        for tp in range(8):
            for n in range(3):
                a4, b4 = Qacc(2 * tp, n), Qacc(2 * tp + 1, n)
                tq = vTMP[4 * ((tp * 3 + n) % 4):4 * ((tp * 3 + n) % 4) + 4]
                for r in (a4, b4):
                    conv.append(valu("v_pk_mul_f32", r[0:2], r[0:2], sC)); conv.append(valu("v_pk_mul_f32", r[2:4], r[2:4], sC))
                conv.append(valu("v_cvt_pk_bf16_f32", tq[0], a4[0], a4[1])); conv.append(valu("v_cvt_pk_bf16_f32", tq[2], b4[0], b4[1]))
                conv.append(valu("v_cvt_pk_bf16_f32", tq[1], a4[2], a4[3])); conv.append(valu("v_cvt_pk_bf16_f32", tq[3], b4[2], b4[3]))
                if pend: conv += pend
                qf = Qf(tp, n)
                pend = [valu("v_permlane16_swap_b32", tq[0], tq[2]), valu("v_permlane16_swap_b32", tq[1], tq[3])] + \
                       [valu("v_accvgpr_write_b32", qf[k_], tq[k_]) for k_ in range(4)]
        conv += pend
        groups = []; cur = []; c = 0
        for o in conv:
            cur.append(o); c += vcost(o)
            if c >= 4: groups.append(cur); cur = []; c = 0
        if cur: groups.append(cur)
        return groups
    qend = len(T.m)
    if cfg.stamps: T.raw(qend, *st.stamp('conv0'))
    for g_ in conv_ops(): T.add(g_)
    if cfg.stamps: T.raw(len(T.m), *st.stamp('conv1'))
    for u in range(16):
        add_unit('k', u, 16, lambda f0: [mfma16(Sreg(u, kt, n), fr(f0 + 2 * s + kt), Qf(s, n),
                                                Sreg(u, kt, n) if s else (0 if u < 2 else vNEGM[4 * n:4 * n + 4]))
                                         for s in range(8) for kt in range(2) for n in range(3)],
                 pre_extra=ones(u - 2, u == 2) if u >= 2 else ())
    def pv_mf(sl, kb, frf):
        return [mfma16(Oacc(sl, t, n), frf(4 * ks + t), Preg(4 * kb + ks, n), Oacc(sl, t, n) if (kb or ks) else 0)
                for ks in range(4) for t in range(4) for n in range(3)]
    def add_v(i):
        sl, kb = divmod(i, 4)
        first = i == 0
        add_unit('v', i, 16, lambda f0: pv_mf(sl, kb, lambda i_: fr(f0 + i_)),
                 pre_extra=ones(14) if first else (), post_extra=ones(15) if first else ())
    opn = [0]
    def add_o(sl, hh):
        first = opn[0] == 0; opn[0] += 1
        bb = PKR if hh == 3 else BB[sl, hh]
        add_unit('o', 4 * sl + hh, 14, lambda f0: [mfma16(Out(nt, n), fr(f0 + 7 * tt + nt), bb[12 * tt + 4 * n:12 * tt + 4 * n + 4],
                                                          Out(nt, n) if (tt or not first) else 0)
                                                   for tt in range(2) for nt in range(7) for n in range(3)])
    for i in range(7): add_v(i)
    add_o(0, 3)
    for i in range(7, 11): add_v(i)
    add_o(1, 3)
    for i in range(11, 15): add_v(i)
    add_o(2, 3); add_v(15)
    for hh in range(3): add_o(0, hh)
    add_o(3, 3)
    for sl in (1, 2):
        for hh in range(3): add_o(sl, hh)
    FORD = [(hh, tt, nt) for pc in range(4) for hh in range(3) for tt in range(2) for nt in range(2 * pc, min(2 * pc + 2, 7))]
    add_unit('f', 0, 42, lambda f0: [mfma16(Out(nt, n), fr(f0 + i), BB[3, hh][12 * tt + 4 * n:12 * tt + 4 * n + 4], Out(nt, n))
                                     for i, (hh, tt, nt) in enumerate(FORD) for n in range(3)])
    end_pos = len(T.m)
    NU = len(plan)
    def U(kind, idx): return next(i for i, u in enumerate(plan) if u['kind'] == kind and u['idx'] == idx)
    def UO(sl, hh): return NU - 1 if (sl == 3 and hh < 3) else U('o', 4 * sl + hh)

    for ui, un in enumerate(plan):
        nf = un['nf']; base = un['base']
        un['rlast'] = base + 3 * (nf - 1) - 3 * (NFR - 1) + 2
        un['bar'] = 0 if ui == 0 else plan[ui - 1]['rlast'] + 8
        un['rfirst'] = un['bar'] + 1 if ui else 0
        un['slots'] = {}
    bar = lambda ui: plan[ui]['bar']
    def release_pos(ui):
        if plan[ui]['kind'] == 'v' and plan[ui]['idx'] == 0 and cfg.fallback: return plan[ui + 2]['bar']
        return plan[ui + 1]['bar'] if ui + 1 < NU else end_pos + 100

    dma_busy = set()
    def put_dma(item, p):
        pre, m0, ld = item
        p = max(p, 1)
        while (p in dma_busy) or (p - 1 in dma_busy) or not T.free(p, ld) or not T.free(p - 1, m0): p += 1
        dma_busy.add(p); dma_busy.add(p - 1)
        for x in pre: T.put(p - 1, x)
        T.put(p - 1, m0); T.put(p, ld)
        return p

    for ui, un in enumerate(plan):
        un['barins'] = barrier(needs=[])
        T.head(un['bar'], un['barins']); T.gap(un['bar'])['ns'] += 1
        if cfg.stamps and (ui % cfg.stampmod == cfg.stampmod // 2 or ui == 0 or ui == NU - 1): T.gap(un['bar'])['head'] += st.stamp(f"{un['kind']}{un['idx']}")

    v0 = plan[U('v', 0)]
    free_at = {7: 0, 8: 0, 9: 0, 2: bar(11), 6: bar(11), 3: bar(12), 0: bar(13), 4: bar(13), 5: bar(13), 1: bar(14)}
    regk = {3 + k_: (16 * k_ if k_ < 6 else 200 + 16 * (k_ - 6)) for k_ in range(cfg.nreg)}
    pvstart = plan[U('v', 4)]['base']
    epi_win = {}; pub_ui = {}; ckpos = {}; st_win = {}
    for sl in range(4):
        e0 = plan[U('v', 4 * sl + 3)]['end'] + 4
        e1 = e0 + (cfg.epilen if sl < 3 else cfg.epilen3)
        epi_win[sl] = (e0, e1)
        sg = cfg.stgap if sl < 3 else cfg.stgap3
        step = (e1 - e0) // 6 + 1
        st_win[sl] = [max(e0 + (k_ + 1) * step + 2, e0 + k_ * sg) for k_ in range(6)]
        se = st_win[sl][-1] + 12
        pub_ui[sl] = next(i_ for i_ in range(NU) if bar(i_) >= se + cfg.publag)
        ob = plan[UO(sl, 0)]['base']
        ckpos[sl] = min(bar(pub_ui[sl]) + cfg.cklag, ob - (cfg.olead if sl < 3 else cfg.olead3))
        assert ckpos[sl] > bar(pub_ui[sl]) + 8
    streams = {k_: [] for k_ in ('kv', 'w', 'x', 'ol', 't', 'wr', 'st')}
    done_pro = set(t for g in pgroups for t in g)
    for s_ in range(14):
        if f"W{s_}" not in done_pro:
            streams['w'].append(dict(kind='W', id=s_, n=4, rel=bar(s_ - 3) + 2 if s_ >= 4 else 1, need=bar(s_)))
    for j_ in range(7):
        if f"X{j_}" not in done_pro:
            streams['x'].append(dict(kind='X', id=j_, n=6, rel=bar(2 * j_ - 3) + 2 if j_ >= 2 else 1, need=bar(2 * j_)))
    for kv in range(32):
        ui = U('k', kv) if kv < 16 else U('v', kv - 16)
        streams['kv'].append(dict(kind='KV', id=kv, ui=ui, n=4, rel=cfg.kv0, need=bar(ui), slot=kv not in regk))
    wt0 = plan[U('k', cfg.wtpos)]['base'] + 6
    for sl in range(4):
        streams['t'].append(dict(kind='WT', id=sl, n=1, rel=wt0 + 10 * sl, need=wt0 + 10 * sl + 10))
    worder = sorted([(bar(UO(sl, hh)), sl, hh) for sl in range(4) for hh in range(4)])
    for b_, sl, hh in worder:
        rel = max(b_ - cfg.womaxlead, wt0 + 40 + cfg.wtgap)
        streams['w'].append(dict(kind='WO', id=(sl, hh), ui=UO(sl, hh), n=4, rel=rel, need=b_, slot=True))
    for sl in range(4):
        for hh in range(3):
            i_ = UO(sl, hh); bb = BB[sl, hh]
            rel = ckpos[sl] + 1
            if bb.k == 'a' and bb.i < 48: rel = max(rel, epi_win[3][1] + 2)
            elif bb.k == 'a' and bb.i < 96: rel = max(rel, epi_win[2][1] + 2)
            if bb.k == 'v': rel = max(rel, plan[U('v', 12 + (bb.i + 23) // 48)]['end'] + 1)
            need = plan[i_]['base'] + (12 * hh if sl == 3 else 0)
            rel = max(rel, need - cfg.olmax)
            streams['ol'].append(dict(kind='OL', id=(sl, hh), ui=i_, n=6, rel=rel, need=need))
    for sl in range(4):
        for k_ in range(6): streams['st'].append(dict(kind='ST', id=(sl, k_), n=1, rel=st_win[sl][k_], need=st_win[sl][k_] + 14))
    sched = []
    nxt_any = 1; nxt_hbm = cfg.kv0; kv_end = None; k15_done = None
    wo_res = []
    p = 1
    while any(streams.values()):
        assert p < end_pos + 50, [(k_, v_[0]) for k_, v_ in streams.items() if v_]
        fs = sorted(s_ for s_ in free_at if free_at[s_] + 2 <= p)
        if streams['wr'] and streams['wr'][0]['rel'] <= p and fs:
            g = streams['wr'].pop(0); g['slot'] = fs[0]; g['pos'] = p
            plan[g['ui']]['slots'][0] = fs[0]; free_at[fs[0]] = release_pos(g['ui']); sched.append(g); fs = fs[1:]
            if streams['wr']: streams['wr'][0]['rel'] = max(streams['wr'][0]['rel'], p + 12)
        if p >= nxt_any:
            cands = []
            for k_, q in streams.items():
                if not q or k_ == 'wr': continue
                g = q[0]; i_ = len(g.setdefault('pos', []))
                if p < g['rel']: continue
                if g['kind'] == 'WO' and (k15_done is None or p < k15_done + 8): continue
                dl = g['need'] - (cfg.minlead - 12 * i_ if k_ == 'kv' else 0)
                if g.get('slot') is True:
                    resv = len([w for w in streams['wr'] if w['rel'] <= p + 30])
                    if len(fs) <= resv and not (k_ == 'kv' and p >= dl): continue
                    if not fs: continue
                    pend_low = len([k2 for k2, rk2 in regk.items() if rk2 < 96 and not any(x['kind'] == 'WR' and x['id'] == k2 for x in sched)])
                    if pend_low and g['id'] not in (0, 1, 2) and len([s2 for s2 in free_at if free_at[s2] <= bar(14)]) <= pend_low: continue
                    if g['kind'] == 'WO' and streams['kv'] and p < g['need'] - cfg.wourg:
                        if len(fs) < 2 or len([r_ for r_ in wo_res if r_ > p]) >= cfg.womax: continue
                if k_ == 'kv' and p < nxt_hbm and p < dl: continue
                cands.append((dl if k_ != 'kv' else min(dl, p + cfg.kvprio), k_))
            if cands:
                _, k_ = min(cands); g = streams[k_][0]
                if g.get('slot') is True:
                    g['slot'] = fs[0]; free_at[fs[0]] = release_pos(g['ui'])
                    plan[g['ui']]['slots'][g['id'][1] if (g['kind'] == 'WO' and g['ui'] == NU - 1) else 0] = fs[0]
                    if g['kind'] == 'WO': wo_res.append(release_pos(g['ui']))
                g['pos'].append(p)
                ga = 2 if p < 40 else (cfg.ga1 if p < bar(12) else (cfg.ga2 if (kv_end is None or p < kv_end + 70) else cfg.ga3))
                nxt_any = p + ga
                if k_ == 'kv': nxt_hbm = max(min(nxt_hbm, p), p - 8) + (cfg.d1 if p < bar(11) else (cfg.d2 if p < pvstart else cfg.d3))
                if len(g['pos']) == g['n']:
                    streams[k_].pop(0); sched.append(g)
                    if g['kind'] == 'KV':
                        if g['id'] == 15: k15_done = p
                        if g['id'] == 31: kv_end = p
                        if g['id'] in regk:
                            rk_ = regk[g['id']]
                            streams['wr'].append(dict(kind='WR', id=g['id'], ui=g['ui'], rel=min(p + cfg.wrlag, qend - 30 + rk_) if rk_ < 96 else bar(g['ui']) - 75))
        p += 1

    region = {'kv': 0, 'wo': 0}
    use_end = {}
    for ui, un in enumerate(plan):
        base, kind, idx, nf = un['base'], un['kind'], un['idx'], un['nf']
        r0, r1 = un['rfirst'], max(un['rlast'], un['rfirst'])
        toks = []; xtk = []
        if kind == 'q':
            if idx % 2 == 0:
                xb = XB[(idx // 2) % 2] - XB[0]
                for par in range(2):
                    for n in range(3):
                        g_ = (idx + par) % 3
                        r = ds_read("ds_read_b128", aXF[g_ * 12 + 4 * n:g_ * 12 + 4 * n + 4], vXR[par], xb + n * 2048)
                        if ui: T.place(r, r0 + 2 + 3 * (3 * par + n), r0 + 24)
                        elif par == 0: T.put(0, r)
                        else: T.place(r, 3 + 3 * n, 12)
                        plan[ui + par]['mf'][n].needs.append(r.tok); xtk.append(r.tok)
        elif kind == 'f':
            adj = [valu("v_add_u32", vWOR3[hh], hex(((un['slots'][hh] * 16384) - region['wo'] * 65536) & 0xffffffff), vWOR) for hh in range(3)]
            T.chain(adj, plan[ui - 1]['rfirst'] + 1, hard_end=r0 - 1)
        else:
            slot = un['slots'][0]; regn = slot // 4; sbase = (slot % 4) * 16384
            adj = []
            if kind == 'v' and idx == 0:
                adj += [valu("v_accvgpr_read_b32", vKR[t], aST[ST_VR + t]) for t in range(4)]; region['kv'] = 0
            key = 'wo' if kind == 'o' else 'kv'
            d = regn - region[key]
            if d:
                lit = hex((d * 65536) & 0xffffffff)
                adj += [valu("v_add_u32", a_, lit, a_) for a_ in ([vWOR] if kind == 'o' else [vKR[i] for i in range(4)])]
                region[key] = regn
            if adj: T.chain(adj, plan[ui - 1]['rlast_actual'] + 1, hard_end=r0 - 1)
        lastp = r0
        for i in range(nf):
            f = un['f0'] + i
            pos = r0 + int(round(i * (r1 - r0) / (nf - 1.0)))
            if ui == 0: pos = max(0, base + 3 * i - 24)
            use_end[f] = base + 3 * i + 3
            if f >= NFR: pos = max(pos, use_end[f - NFR])
            if kind == 'q':
                a_, tb = divmod(i, 8)
                rs = [ds_read("ds_read_b64_tr_b16", fr(f)[2 * hh:2 * hh + 2], vWR[tb], WB[idx % 4] + a_ * 256 + hh * 2048) for hh in range(2)]
            elif kind == 'k':
                s_, kt = divmod(i, 2); a_, sb = divmod(s_, 4)
                rs = [ds_read("ds_read_b128", fr(f), vKR[sb], sbase + kt * 8192 + a_ * 256)]
            elif kind == 'v':
                ks, t = divmod(i, 4)
                rs = [ds_read("ds_read_b64_tr_b16", fr(f)[2 * hh:2 * hh + 2], vKR[t], sbase + ks * 4096 + hh * 2048) for hh in range(2)]
            elif kind == 'o':
                tt, nt = divmod(i, 7)
                rs = [ds_read("ds_read_b64_tr_b16", fr(f)[2 * hh:2 * hh + 2], vWOR, sbase + tt * 7168 + hh * 3584 + nt * 32) for hh in range(2)]
            else:
                h3, tt, nt = FORD[i]
                rs = [ds_read("ds_read_b64_tr_b16", fr(f)[2 * hh:2 * hh + 2], vWOR3[h3], tt * 7168 + hh * 3584 + nt * 32) for hh in range(2)]
            for r in rs:
                if ui == 0 and pos == 0: lastp = T.put(0, r)
                else: lastp = T.place(r, max(pos, lastp), max(pos, lastp) + 2)
                toks.append(r.tok)
            un.setdefault('ftok', []).append([r.tok for r in rs])
            un.setdefault('fpos', []).append(lastp)
        un['rlast_actual'] = lastp
        assert ui + 1 >= NU or lastp < plan[ui + 1]['bar'], (ui, lastp, plan[ui + 1]['bar'])
        if ui + 1 < NU: plan[ui + 1]['barins'].needs += toks[-2:] + xtk
        for i in range(0, nf, 2):
            nd = list(un['ftok'][i])
            if i + 1 < nf and un['fpos'][i + 1] < base + 3 * i - 5: nd += un['ftok'][i + 1]
            elif i + 1 < nf: un['mf'][3 * (i + 1)].needs += un['ftok'][i + 1]
            if ui == 0 and i == 0: un['mf'][0].needs += nd
            else: T.head(base + 3 * i, waitpt(nd), count=True)
            un['mf'][3 * i].needs += un['ftok'][i]

    rtok = {}; last_k_pos = 0; first_wo = 10 ** 9; st_g = {}; wt_pos = []
    ev = []
    for g in sched:
        k_ = g['kind']
        if k_ == 'WR': continue
        if k_ == 'W': items = dma_w(g['id']); wtok[g['id']] = [it[2].tok for it in items]
        elif k_ == 'X': items = dma_x(g['id']); xtok[g['id']] = [it[2].tok for it in items]
        elif k_ == 'WO': items = dma_wo(g['id'][0], g['id'][1], g['slot'])
        elif k_ == 'KV' and g['id'] not in regk: items = dma_kv(g['id'], g['slot'])
        elif k_ == 'KV':
            kv = g['id']
            items = tag([([salu("s_mov_b32", sKV, kv * 16384)] if i_ == 0 else [], None,
                          buf_load("buffer_load_dwordx4", A(regk[kv] + 4 * i_, 4), vKD[i_], rK, sKV, i_ * 1024, cfg.kv_flags)) for i_ in range(4)])
            rtok[kv] = [it[2].tok for it in items]
        elif k_ == 'WT':
            items = tag([([salu("s_mov_b32", sTO, g['id'] * 64 * 896)], None,
                          buf_load("buffer_load_dword", A(248 + g['id']), vT3[0], rT, sTO, 0, cfg.wt_flags))])
        elif k_ == 'ST':
            sl, kk = g['id']; tt, n = divmod(kk, 3)
            items = tag([([salu("s_add_u32", sOS, sOSB, (2 * sl + tt) * 3072)], None,
                          buf_store("buffer_store_dwordx4", PKR[kk * 4:kk * 4 + 4], vOST, rOF, sOS, n * 1024, "sc1"))])
            st_g[sl, kk] = g
            if kk == 5: plan[pub_ui[sl]]['barins'].needs.append(items[0][2].tok)
        elif k_ == 'OL':
            sl, hh = g['id']; un = plan[g['ui']]; bb = BB[sl, hh]; items = []
            for tt in range(2):
                for n in range(3):
                    l_ = buf_load("buffer_load_dwordx4", bb[12 * tt + 4 * n:12 * tt + 4 * n + 4], vOST, rOF, sOL, n * 1024, "sc1")
                    mi = 21 * tt + n if sl < 3 else 3 * FORD.index((hh, tt, 0)) + n
                    un['mf'][mi].needs.append(l_.tok)
                    items.append(([salu("s_add_u32", sOL, sOH[hh], (2 * sl + tt) * 3072)] if n == 0 else [], None, l_))
            tag(items)
        g['ap'] = []
        for it, p in zip(items, g['pos']): ev.append((p, it, g))
        if k_ in ('KV', 'WO') and not (k_ == 'KV' and g['id'] in regk): plan[g['ui']]['barins'].needs += [it[2].tok for it in items]
    ev.sort(key=lambda e: e[0])
    if cfg.kvwin:
        kvl = [(p, it[2]) for p, it, g in ev if g['kind'] == 'KV']
        for k_ in range(cfg.kvwin, len(kvl)):
            if kvl[k_][0] >= bar(cfg.kvwin0): kvl[k_][1].needs.append(kvl[k_ - cfg.kvwin][1].tok)
    lastp = 0
    for p, it, g in ev:
        p = max(p, lastp + 1)
        if it[1] is not None: p = put_dma(it, p)
        else:
            while not T.free(p, it[2]): p += 1
            for x in it[0]: T.put(p, x)
            T.put(p, it[2])
        lastp = p; g['ap'].append(p)
    for g in sched:
        if g['kind'] in ('W', 'X', 'KV', 'WO', 'OL', 'ST'):
            assert g['ap'][-1] < g['need'], ("too late", g)
            if g['kind'] == 'KV' and g['id'] == 15: last_k_pos = g['ap'][-1]
            if g['kind'] == 'WO': first_wo = min(first_wo, g['ap'][0])
        if g['kind'] == 'WT': wt_pos.append(g['ap'][0])
    print("leads:", " ".join(f"{g['kind']}{g['id']}:{g['need'] - g['ap'][-1]}".replace(" ", "") for g in sched if g['kind'] in ('W', 'X', 'KV', 'WO', 'OL')), file=sys.stderr)
    for s_ in range(14):
        plan[s_]['barins'].needs += wtok[s_] + (xtok[s_ // 2] if s_ % 2 == 0 else [])
    lp_ = T.chain(late, cfg.late0)
    print(f"late setup ends at {lp_[-1]}", file=sys.stderr)
    assert lp_[-1] < bar(9)
    for g in sched:
        if g['kind'] != 'WR': continue
        kv = g['id']; un = plan[g['ui']]; slot = g['slot']
        tmp = V(226) if regk[kv] < 96 else vT3[0]
        ops = [valu("v_accvgpr_read_b32", tmp, aST[ST_KW])]
        if slot >= 4: ops.append(valu("v_add_u32", tmp, (slot // 4) * 65536, tmp))
        wt = []
        for i_ in range(4):
            w_ = ds_write("ds_write_b128", tmp, A(regk[kv] + 4 * i_, 4), (slot % 4) * 16384 + i_ * 1024, needs=[rtok[kv][i_]]); ops.append(w_); wt.append(w_.tok)
        ps = T.chain(ops, g['pos'])
        assert ps[-1] < un['bar'] - 4
        if regk[kv] < 96: assert ps[-1] < qend + (regk[kv] // 4) * 4 - 2 or ps[-1] < qend, (kv, ps, qend)
        else: assert ps[0] > max(wt_pos) + 1, (kv, ps)
        un['barins'].needs += wt
    T.chain([valu("v_accvgpr_read_b32", vKD[i], aST[ST_WOD + i]) for i in range(4)], last_k_pos + 1, hard_end=first_wo - 2)

    spin = []
    def spin_code(name, load, test):
        spin.extend([label(f"L_spin{name}"), raw("s_sleep 2"),
                     raw(f"s_add_u32 {sSPIN}, {sSPIN}, 1"), raw(f"s_cmp_gt_u32 {sSPIN}, 0x40000"), raw(f"s_cbranch_scc1 L_ret{name}"),
                     raw(load), raw("s_waitcnt vmcnt(0)")] + [raw(t) for t in test] +
                    [raw(f"s_cbranch_scc1 L_spin{name}"), raw(f"s_branch L_ret{name}")])
    a_ = Ins(f"buffer_atomic_add {vT3[1]}, {vT3[0]}, {rDB}, 0 offen sc1", 'vmem', (), vT3.set() | rDB.set(), needs=[zst.tok]); a_.tok = Tok('vm')
    T.chain([valu("v_accvgpr_read_b32", vT3[0], aST[ST_DA]), valu("v_mov_b32", vT3[1], 1), a_], qend + 2)
    T.chain([valu("v_accvgpr_read_b32", vT3[0], aST[ST_WT])], wt0 - 5, hard_end=wt0 - 1)
    ild = buf_load("buffer_load_dword", vT3[1], vT3[0], rDB, 0, 0, "sc1")
    T.chain([valu("v_accvgpr_read_b32", vT3[0], aST[ST_DA]), ild], plan[U('k', 13)]['base'] + 1)
    ichk = [valu("v_readfirstlane_b32", sFL, vT3[1], needs=[ild.tok]), salu("s_lshl_b32", sT0, sWAVE, 4), salu("s_add_u32", sFL, sFL, sT0),
            salu("s_cmp_lt_u32", None, sFL, 16), raw("s_cbranch_scc1 L_spinI", 'branch'), label("L_retI")]
    spin_code("I", f"buffer_load_dword {vT3[1]}, {vT3[0]}, {rDB}, 0 offen sc1",
              [f"v_readfirstlane_b32 {sFL}, {vT3[1]}", "s_nop 4", f"s_cmp_lt_u32 {sFL}, 16"])

    def max_ops(srcs, n, ta, tb_):
        ops = [valu("v_max3_f32", ta, srcs[0], srcs[1], srcs[2])]
        k = 3
        while k + 1 < len(srcs): ops.append(valu("v_max3_f32", ta, ta, srcs[k], srcs[k + 1])); k += 2
        if k < len(srcs): ops.append(valu("v_max_f32", ta, ta, srcs[k]))
        ops.append(valu("v_mov_b32", tb_, ta)); ops.append(valu("v_permlane16_swap_b32", ta, tb_)); ops.append(valu("v_max_f32", ta, ta, tb_))
        ops.append(valu("v_mov_b32", tb_, ta)); ops.append(valu("v_permlane32_swap_b32", ta, tb_)); ops.append(valu("v_max_f32", ta, ta, tb_))
        for k_ in range(4): ops.append(valu("v_sub_f32", vNEGM[4 * n + k_], 0, ta))
        return ops
    def softmax_ops(u, sreg, sub):
        ops = []; pend = None
        for n in range(3):
            for kt in range(2):
                s4 = sreg(kt, n); p = Preg(u, n)
                if sub:
                    for k_ in range(4): ops.append(valu("v_add_f32", s4[k_], s4[k_], vNEGM[4 * n]))
                for k_ in range(4):
                    ops.append(valu("v_exp_f32", s4[k_], s4[k_]))
                    if pend and k_ in (0, 2): ops.append(pend.pop(0))
                pend = [valu("v_cvt_pk_bf16_f32", p[2 * kt], s4[0], s4[1]), valu("v_cvt_pk_bf16_f32", p[2 * kt + 1], s4[2], s4[3])]
        return ops + pend
    for u in range(16):
        nxt = plan[14 + u + 1]; b0 = nxt['base']
        if u < 2:
            ops = []
            if u == 0:
                for n in range(3): ops += max_ops([Sreg(0, kt, n)[k_] for kt in range(2) for k_ in range(4)], n, vT3[0], vT3[1])
            ops += softmax_ops(u, lambda kt, n: Sreg(u, kt, n), True)
            T.chain(ops, b0 + 3, end=b0 + 46, hard_end=b0 + 47)
        else:
            start = b0 + (0 if nxt['kind'] == 'k' or True else 3)
            exps = [(kt, n, k_) for n in range(3) for kt in range(2) for k_ in range(4)]
            eo = [valu("v_exp_f32", Sreg(u, kt, n)[k_], Sreg(u, kt, n)[k_]) for kt, n, k_ in exps]
            ep = T.chain(eo, start, hard_end=b0 + 44)
            for j_ in range(12):
                kt, n, k_ = exps[2 * j_]; s4 = Sreg(u, kt, n)
                c_ = valu("v_cvt_pk_bf16_f32", Preg(u, n)[2 * kt + k_ // 2], s4[k_], s4[k_ + 1])
                q = ep[2 * j_ + 1] + 1
                cand = [x for x in range(q, b0 + 47) if T.free(x, c_)]
                half = [x for x in cand if T.gap(x)['nv'] + max(0, T.gap(x)['ns'] - 1) == 1]
                T.put((half or cand or [b0 + 47])[0], c_)

    chk = list(ichk)
    for n in range(3): chk.append(valu("v_accvgpr_read_b32", vT3[0] if n == 0 else (vT3[1] if n == 1 else V(192)), aL[4 * n]))
    if cfg.fallback:
        chk.append(valu("v_add_f32", V(194), vT3[0], vT3[1])); chk.append(valu("v_add_f32", V(194), V(194), V(192)))
        chk.append(salu("s_mov_b32", sT0, hex(L_LIMIT)))
        chk.append(valu("v_cmp_nge_f32", "vcc", sT0, V(194)))
        chk.append(raw("s_cbranch_vccnz L_fallback", 'branch', rd=['vcc']))
        chk.append(label("L_fb_ret"))
    T.raw(v0['end'], *chk)
    T.chain([valu("v_rcp_f32", vR[0], vT3[0]), valu("v_rcp_f32", vR[1], vT3[1]), valu("v_rcp_f32", vR[2], V(192)),
             valu("v_accvgpr_read_b32", vFA, aST[ST_FA]), valu("v_accvgpr_read_b32", vFG, aST[ST_FG]),
             valu("v_accvgpr_read_b32", vWOR, aST[ST_WOR])], v0['end'] + 1)

    def epi_ops(sl):
        ops = []; k_ = 0
        for tt in range(2):
            for n in range(3):
                pk = PKR[(tt * 3 + n) * 4:(tt * 3 + n) * 4 + 4]
                for hf in range(2):
                    tb_ = V(216 + 4 * (k_ % 3), 4); k_ += 1
                    a4 = Oacc(sl, 2 * tt + hf, n)
                    for i in range(4): ops.append(valu("v_accvgpr_read_b32", tb_[i], a4[i]))
                    for i in range(4): ops.append(valu("v_mul_f32", tb_[i], tb_[i], vR[n]))
                    for i in range(2): ops.append(valu("v_cvt_pk_bf16_f32", pk[2 * hf + i], tb_[2 * i], tb_[2 * i + 1]))
        return ops
    def flagst(val):
        return [valu("v_mov_b32", vFD, val), buf_store("buffer_store_dword", vFD, vFA, rFL, 0, 0, "sc1")]
    for sl in range(4):
        cpos = ckpos[sl]; pb = bar(pub_ui[sl])
        pp = T.chain(flagst(sl + 1), pb + 1, hard_end=pb + 4)
        ld = buf_load("buffer_load_dword", vFP, vFG, rFL, 0, 0, "sc1")
        lp = T.put(max(cpos - cfg.cklead, min(pb + 45, cpos - 30), pp[-1] + 1), ld)
        ck = [valu("v_cmp_gt_u32", "vcc", sl + 1, vFP, needs=[ld.tok]),
              raw("s_cmp_lg_u64 vcc, 0", 'salu', rd=['vcc']),
              raw(f"s_cbranch_scc1 L_spin{sl}", 'branch'), label(f"L_ret{sl}")]
        if cfg.stamps and cfg.ckst: ck = st.stamp(f"ck{sl}a") + ck + st.stamp(f"ck{sl}b")
        T.raw(cpos, *ck)
        spin_code(str(sl), f"buffer_load_dword {vFP}, {vFG}, {rFL}, 0 offen sc1",
                  [f"v_cmp_gt_u32 vcc, {sl + 1}, {vFP}", "s_nop 4", "s_cmp_lg_u64 vcc, 0"])
        print(f"slice {sl}: epi {epi_win[sl]} publish {pb} flagload {lp} check {cpos} opbase {plan[UO(sl, 0)]['base']}", file=sys.stderr)
    for sl in range(4):
        ops = epi_ops(sl)
        e0, e1 = epi_win[sl]
        step = (e1 - e0) // 6 + 1
        p_ = e0
        for kk in range(6):
            if sl: p_ = max(p_, st_g[sl - 1, kk]['ap'][0] + 2)
            ps = T.chain(ops[20 * kk:20 * kk + 20], p_, hard_end=min(e0 + (kk + 1) * step, e1))
            assert ps[-1] < st_g[sl, kk]['ap'][0] and ps[0] >= p_, (sl, kk, ps, st_g[sl, kk]['ap'])
            p_ = ps[-1] + 1
        for s2 in range(sl + 1, 4):
            if OBUF[s2] == OBUF[sl]: assert e1 < plan[U('v', 4 * s2)]['base'], "O acc reuse"
        assert e1 < plan[U('o', 4 * sl + 3)]['base'], "epilogue must finish before own-head unit"
        if sl: assert e0 >= plan[U('o', 4 * sl - 1)]['end']

    fin = plan[-1]
    vL16, vO, vLN, vPF = V(192), V(193), V(194), V(195)
    pre_t = lane_id(vLN) + [valu("v_lshlrev_b32", vL16, 4, vLN),
             valu("v_and_b32", V(196), 15, vLN), valu("v_lshrrev_b32", V(197), 4, vLN),
             valu("v_mul_u32_u24", vO, 896, V(196)), valu("v_lshl_add_u32", vO, V(197), 3, vO),
             salu("s_lshl_b32", sT2, sIH, 8), valu("v_and_b32", vPF, 3, vLN), valu("v_lshlrev_b32", vPF, 10, vPF), valu("v_add_u32", vPF, sT2, vPF)]
    T.chain(pre_t, plan[-2]['base'], hard_end=fin['base'] + 20)
    def part_ops(pc):
        ops = []
        for n in range(3):
            sl_ = pc * 3 + n
            tb_ = V(12 * (sl_ % 8), 12)
            nt2 = 2 if pc < 3 else 1
            for hf in range(nt2):
                for i in range(4): ops.append(valu("v_accvgpr_read_b32", tb_[4 * hf + i], Out(2 * pc + hf, n)[i]))
            for i in range(2 * nt2): ops.append(valu("v_cvt_pk_bf16_f32", tb_[8 + i], tb_[2 * i], tb_[2 * i + 1]))
            if n == 0: ops.append(salu("s_add_u32", sT1, sPS, pc * 3072))
            ops.append(buf_store("buffer_store_dwordx4" if nt2 == 2 else "buffer_store_dwordx2", tb_[8:8 + 2 * nt2], vL16, rPT, sT1, n * 1024, "sc1"))
        return ops
    lastq = fin['base'] + 21
    for pc in range(3):
        ps = T.chain(part_ops(pc), max(fin['base'] + 36 * (pc + 1) + 4, lastq + 1), hard_end=end_pos - 1)
        lastq = ps[-1]
    tail = []; A_ = tail.append
    tail += st.stamp('opend')
    tail += part_ops(3)
    A_(valu("v_mov_b32", vFD, 5))
    A_(wait_all())
    A_(barrier())
    A_(buf_store("buffer_store_dword", vFD, vFA, rFL, 0, 0, "sc1"))
    tail += st.stamp('pub')
    A_(label("L_poll"))
    A_(raw(f"buffer_load_dword v198, {vPF}, {rFL}, 0 offen sc1", 'other')); A_(raw("s_waitcnt vmcnt(0)"))
    A_(raw("v_cmp_gt_u32 vcc, 5, v198")); A_(raw("s_nop 4")); A_(raw("s_cmp_eq_u64 vcc, 0"))
    A_(raw("s_cbranch_scc1 L_pollskip")); A_(raw("s_sleep 1"))
    A_(raw(f"s_add_u32 {sSPIN}, {sSPIN}, 1")); A_(raw(f"s_cmp_gt_u32 {sSPIN}, 0x40000")); A_(raw("s_cbranch_scc0 L_poll"))
    A_(label("L_pollskip"))
    tail += st.stamp('polled')
    lt = {}
    for k in range(4):
        if k: A_(salu("s_add_u32", sSRC, sSRC, 12288))
        for n in range(3):
            l_ = buf_load("buffer_load_dwordx4", V(16 * n + 4 * k, 4), vL16, rPT, sSRC, n * 1024, "sc1"); A_(l_); lt[n, k] = l_.tok
    A_(salu("s_mov_b32", sT0, "0xffff0000"))
    for k in range(4):
        for n in range(3):
            acc = V(64 + 8 * n, 8); src = V(16 * n + 4 * k, 4)
            for i in range(4):
                if k == 0:
                    A_(valu("v_lshlrev_b32", acc[2 * i], 16, src[i], needs=[lt[n, k]])); A_(valu("v_and_b32", acc[2 * i + 1], sT0, src[i]))
                else:
                    t0_, t1_ = V(96 + 2 * (i % 2)), V(97 + 2 * (i % 2))
                    A_(valu("v_lshlrev_b32", t0_, 16, src[i], needs=[lt[n, k]])); A_(valu("v_and_b32", t1_, sT0, src[i]))
                    A_(valu("v_add_f32", acc[2 * i], acc[2 * i], t0_)); A_(valu("v_add_f32", acc[2 * i + 1], acc[2 * i + 1], t1_))
            if k == 3:
                pk = V(100 + 4 * n, 4)
                for i in range(4): A_(valu("v_cvt_pk_bf16_f32", pk[i], acc[2 * i], acc[2 * i + 1]))
                if n: A_(valu("v_add_u32", vO, 16 * 896, vO))
                A_(buf_store("buffer_store_dwordx2", pk[0:2], vO, rOUT, sO1, 0))
                A_(buf_store("buffer_store_dwordx2", pk[2:4], vO, rOUT, sO2, 0))
    if cfg.stamps:
        tail += [wait_all()] + st.stamp('end') + st.flush(V(0, 4), 0)
    main = pro + T.flatten() + tail + [label("L_end"), raw("s_endpgm")]

    fb = []
    if cfg.fallback:
        F = fb.append
        F(label("L_fallback")); F(raw("s_nop 15")); F(wait_all())
        vKG = V(216); mx = V(217, 3); ta, tb_ = V(220), V(221)
        Sf = lambda kt, n: V(192 + (kt * 3 + n) * 4, 4)
        kf = lambda i: aX[4 * (i % 6):4 * (i % 6) + 4]
        F(valu("v_accvgpr_read_b32", vKG, aST[ST_KG]))
        def s_unit(cinit):
            ops = []
            for half in range(4):
                lds_ = []
                for q in range(4):
                    i = 4 * half + q; s_, kt = divmod(i, 2)
                    l_ = buf_load("buffer_load_dwordx4", kf(q), vKG, rK, sF1 if kt else sF0, s_ * 64); ops.append(l_); lds_.append(l_.tok)
                for q in range(4):
                    i = 4 * half + q; s_, kt = divmod(i, 2)
                    for n in range(3):
                        ops.append(mfma16(Sf(kt, n), kf(q), Qf(s_, n), Sf(kt, n) if s_ else cinit(n), needs=[lds_[q]]))
                ops.append(nop(7))
            return ops
        for n in range(3): F(valu("v_mov_b32", mx[n], "0xff800000"))
        F(salu("s_mov_b32", sF0, 0)); F(salu("s_mov_b32", sF1, 8192))
        F(label("L_fb_max"))
        fb += s_unit(lambda n: 0)
        for n in range(3):
            for kt in range(2):
                s4 = Sf(kt, n)
                F(valu("v_max3_f32", mx[n], mx[n], s4[0], s4[1])); F(valu("v_max3_f32", mx[n], mx[n], s4[2], s4[3]))
        F(salu("s_add_u32", sF0, sF0, 16384)); F(salu("s_add_u32", sF1, sF1, 16384))
        F(salu("s_cmp_lt_u32", None, sF0, 262144)); F(raw("s_cbranch_scc1 L_fb_max", 'branch'))
        for n in range(3): fb += max_ops([mx[n], mx[n], mx[n]], n, ta, tb_)
        for u in range(16):
            F(salu("s_mov_b32", sF0, u * 16384)); F(salu("s_mov_b32", sF1, u * 16384 + 8192))
            fb += s_unit(lambda n: vNEGM[4 * n:4 * n + 4])
            fb += softmax_ops(u, Sf, False)
            fb += ones(u, u == 0)
        slot = v0['slots'][0]
        va_ = V(192, 4)
        for t in range(4):
            F(valu("v_accvgpr_read_b32", va_[t], aST[ST_VR + t])); F(valu("v_add_u32", va_[t], slot * 16384, va_[t]))
        mfs = pv_mf(0, 0, lambda i: kf(i % 4))
        for ks in range(4):
            for t in range(4):
                for hh in range(2):
                    r = ds_read("ds_read_b64_tr_b16", kf(t)[2 * hh:2 * hh + 2], va_[t], ks * 4096 + hh * 2048); F(r)
                    mfs[3 * (4 * ks + t)].needs.append(r.tok)
            fb += mfs[12 * ks:12 * ks + 12]
            F(nop(7))
        F(nop(7))
        for n in range(3): F(valu("v_accvgpr_read_b32", vT3[0] if n == 0 else (vT3[1] if n == 1 else V(192)), aL[4 * n]))
        F(wait_all()); F(nop(3))
        F(raw("s_branch L_fb_ret", 'branch'))
    print("per-unit overflow:", " ".join(f"{u['kind']}{u['idx']}:{T.stats(u['base'], u['end'])}" for u in plan), file=sys.stderr)
    return main, spin, fb


HEADER = open("cdna_kernels/" + NAME + ".s.ref").read().split("; Override launch")[0]


def build(cfg, path):
    L = [HEADER.rstrip("\n")]
    L.append("; @launch grid=(256,1,1) block=(256,1,1) lds=163840")
    L.append('.amdgcn_target "amdgcn-amd-amdhsa--gfx950"')
    L.append(".text")
    main, spin, fb = kernel(cfg)
    L += render(main); L += render(spin); L += render(fb)
    for k_, v_ in STAMP_NAMES.items(): L.append(f"; STAMPS {k_} " + ",".join(v_))
    L.append(kd(KNAME))
    open(path, "w").write("\n".join(L) + "\n")


if __name__ == "__main__":
    import argparse
    ap = argparse.ArgumentParser()
    ap.add_argument("-o", default="cdna_kernels/" + NAME + ".s")
    ap.add_argument("--stamps", action="store_true")
    ap.add_argument("--opt", action="append", default=[])
    a = ap.parse_args()
    cfg = Cfg(); cfg.stamps = a.stamps
    for o_ in a.opt:
        k_, v_ = o_.split("=", 1)
        assert hasattr(cfg, k_), k_
        try: v_ = int(v_)
        except ValueError: pass
        setattr(cfg, k_, v_)
    build(cfg, a.o)
```
